```python
import torch

def _softmax(x, axis=-1):
    return torch.softmax(x, dim=axis)
def _gelu(x):
    return torch.nn.functional.gelu(x, approximate="tanh")
def _silu(x):
    return torch.nn.functional.silu(x)
def _sigmoid(x):
    return torch.sigmoid(x)
def _layernorm(x, axis=-1, eps=1e-5):
    m = x.mean(dim=axis, keepdim=True)
    v = x.var(dim=axis, keepdim=True, unbiased=False)
    return (x - m) / torch.sqrt(v + eps)
def _scatter_add(tgt, idx, src, axis=0):
    return tgt.clone().index_add_(axis, idx, src)
def _segment_sum(src, seg, n):
    out = torch.zeros((n,) + src.shape[1:], dtype=src.dtype)
    return out.index_add_(0, seg, src)
def _pad(x, pw):
    flat = tuple(v for pair in reversed(pw) for v in pair)
    return torch.nn.functional.pad(x, flat)

kernel_name = 'recurrent_scan__sliding_block_cached__mixer_channel_mlp__decode'

def setup_inputs():

    _w = (lambda a: (lambda t: t.to(torch.bfloat16) if t.is_floating_point() else t)(torch.as_tensor(a)))
    def _A_setup():
        B, Sq, D = 4, 1, 512
        Hq, Hkv, Sk, Dh = 32, 8, 8192, 128
        assert Hq % Hkv == 0, (Hq, Hkv)
        return {
            "x": _w((lambda *s: torch.randn(*s, dtype=torch.bfloat16) * 0.05)(B, Sq, D)),
            "k_cache": _w((lambda *s: torch.randn(*s, dtype=torch.bfloat16) * 3.2)(B, Hkv, Sk, Dh)),
            "v_cache": _w((lambda *s: torch.randn(*s, dtype=torch.bfloat16) * 3.2)(B, Hkv, Sk, Dh)),
            "wq": _w((lambda *s: torch.randn(*s, dtype=torch.bfloat16) * 3.2)(D, Hq * Dh) * (D ** -0.5)),
            "wo": _w((lambda *s: torch.randn(*s, dtype=torch.bfloat16) * 3.2)(Hq * Dh, D) * ((Hq * Dh) ** -0.5)),
        }
    _A_in = _A_setup()

    def _B_setup():
        B, S, D, F = 4, 1, 512, 1792
        return {
            "x": _w((lambda *s: torch.randn(*s, dtype=torch.bfloat16) * 0.05)(B, S, D)),
            "w1": _w((lambda *s: torch.randn(*s, dtype=torch.bfloat16) * 3.2)(D, F) * (D ** -0.5)),
            "b1": _w((lambda *s: torch.randn(*s, dtype=torch.bfloat16) * 3.2)(F)),
            "w2": _w((lambda *s: torch.randn(*s, dtype=torch.bfloat16) * 3.2)(F, D) * (F ** -0.5)),
            "b2": _w((lambda *s: torch.randn(*s, dtype=torch.bfloat16) * 3.2)(D)),
        }
    _B_in = _B_setup()

    return {
        "A_x": _A_in["x"],
        "A_k_cache": _A_in["k_cache"],
        "A_v_cache": _A_in["v_cache"],
        "A_wq": _A_in["wq"],
        "A_wo": _A_in["wo"],
        "B_x": _B_in["x"],
        "B_w1": _B_in["w1"],
        "B_b1": _B_in["b1"],
        "B_w2": _B_in["w2"],
        "B_b2": _B_in["b2"],
    }

def reference(A_x, A_k_cache, A_v_cache, A_wq, A_wo, B_x, B_w1, B_b1, B_w2, B_b2):
    def _A_ref(x, k_cache, v_cache, wq, wo):
        B, Sq, D = x.shape
        Hq, Dh = 32, 128
        Hkv, Sk = k_cache.shape[1], k_cache.shape[2]
        W = min(4096, max(256, Sk // 4))
        rep = Hq // Hkv
        q = (lambda x, *d: x.permute(*d))((x @ wq).reshape(B, Sq, Hq, Dh), 0, 2, 1, 3)
        k = (lambda x, n, axis: torch.repeat_interleave(x, n, dim=axis))(k_cache[:, :, Sk - W:, :], rep, axis=1)
        v = (lambda x, n, axis: torch.repeat_interleave(x, n, dim=axis))(v_cache[:, :, Sk - W:, :], rep, axis=1)
        scores = torch.einsum("bhqd,bhkd->bhqk", q, k) * (Dh ** -0.5)
        p = _softmax(scores, axis=-1)
        o = torch.einsum("bhqk,bhkd->bhqd", p, v)
        return (lambda x, *d: x.permute(*d))(o, 0, 2, 1, 3).reshape(B, Sq, Hq * Dh) @ wo

    def _B_ref(x, w1, b1, w2, b2):
        y = _layernorm(x, axis=-1)
        h = _gelu(torch.einsum("bsd,df->bsf", y, w1) + b1)
        return torch.einsum("bsf,fd->bsd", h, w2) + b2

    x = A_x
    xn = _layernorm(x, axis=-1)
    s = _A_ref(xn, A_k_cache, A_v_cache, A_wq, A_wo)
    g = _silu(_B_ref(xn, B_w1, B_b1, B_w2, B_b2))
    return x + s * g
```

```python
import re

def _regs(tok):
    tok = tok.strip()
    tok = tok.lstrip("-")
    m = re.match(r"abs\((.*)\)", tok)
    if m: tok = m.group(1)
    m = re.fullmatch(r"([vs])(\d+)", tok)
    if m: return [(m.group(1), int(m.group(2)))]
    m = re.fullmatch(r"([vs])\[(\d+):(\d+)\]", tok)
    if m: return [(m.group(1), i) for i in range(int(m.group(2)), int(m.group(3)) + 1)]
    if tok == "vcc": return [("s", 106), ("s", 107)]
    if tok == "exec": return [("s", 126), ("s", 127)]
    if tok == "m0": return [("s", 124)]
    return []

TRANS = ("v_exp_f32", "v_log_f32", "v_rcp_f32", "v_rsq_f32", "v_sqrt_f32", "v_sin_f32", "v_cos_f32")

class Ins:
    def __init__(self, text):
        self.text = text
        t = text.split(";")[0].strip()
        parts = t.split(None, 1)
        self.op = parts[0]
        rest = parts[1] if len(parts) > 1 else ""
        ops = []
        depth = 0; cur = ""
        for ch in rest:
            if ch in "[(": depth += 1
            if ch in "])": depth -= 1
            if ch == "," and depth == 0:
                ops.append(cur); cur = ""
            else:
                cur += ch
        if cur.strip(): ops.append(cur)
        ops2 = []
        self.mods = ""
        for i, o in enumerate(ops):
            o = o.strip()
            if " " in o:
                a, b = o.split(None, 1)
                ops2.append(a); self.mods += " " + b
            else:
                ops2.append(o)
        self.ops = ops2
        op = self.op
        self.kind = None
        self.w = []; self.r = []
        R = [_regs(o) for o in ops2]
        flat = lambda L: [x for l in L for x in l]
        if op.startswith("v_mfma"):
            self.kind = "mfma"; self.w = R[0]; self.rA = R[1] + R[2]; self.rC = R[3]; self.r = self.rA + self.rC
            self.passes = 8 if "32x32" in op else (2 if "4x4" in op else 4)
            if "16x16x4_f32" in op: self.passes = 8
        elif op.startswith("v_"):
            self.kind = "valu"
            if op.startswith("v_permlane") and "swap" in op:
                self.w = R[0] + R[1]; self.r = R[0] + R[1]
            elif op.startswith("v_cmp"):
                self.w = R[0]; self.r = flat(R[1:])
                if op.startswith("v_cmpx"): self.w = self.w + [("s", 126), ("s", 127)]
            elif op in ("v_add_co_u32", "v_sub_co_u32", "v_addc_co_u32", "v_subb_co_u32"):
                self.w = R[0] + R[1]; self.r = flat(R[2:])
            elif op.startswith("v_fmac") or op.startswith("v_writelane") or op.startswith("v_dot2c") or op.startswith("v_pk_fmac"):
                self.w = R[0]; self.r = flat(R)
            else:
                self.w = R[0]; self.r = flat(R[1:])
            if op.startswith("v_cndmask") and len(ops2) == 3:
                self.r = self.r + [("s", 106), ("s", 107)]
            self.dpp = ("_dpp" in op) or ("quad_perm" in self.mods) or ("row_" in self.mods)
            if self.dpp: self.r = self.r + self.w
        elif op.startswith("ds_"):
            self.kind = "ds"
            if op.startswith("ds_read") or op.startswith("ds_bpermute") or op.startswith("ds_swizzle") or "_rtn" in op:
                self.w = R[0]; self.r = flat(R[1:])
            else:
                self.r = flat(R)
        elif op.startswith("global_") or op.startswith("buffer_") or op.startswith("flat_"):
            self.kind = "vmem"
            if "load_lds" in op or " lds" in self.mods:
                self.r = flat(R) + [("s", 124)]
                self.lds = True
            elif "load" in op:
                self.w = R[0]; self.r = flat(R[1:])
            elif "atomic" in op and "sc0" in self.mods:
                self.w = R[0]; self.r = flat(R[1:])
            else:
                self.r = flat(R)
            self.widestore = ("store_dwordx4" in op or "store_dwordx3" in op)
            if self.widestore:
                self.sdata = R[1] if op.startswith("global_") else R[0]
        elif op.startswith("s_load") or op.startswith("s_atomic") or op.startswith("s_mem") or op.startswith("s_buffer"):
            self.kind = "smem"; self.w = R[0] if R else []; self.r = flat(R[1:]) + (R[0] if op.startswith("s_atomic") else [])
        elif op.startswith("s_"):
            self.kind = "salu"
            if op.startswith("s_cmp") or op.startswith("s_cbranch") or op in ("s_branch", "s_waitcnt", "s_barrier", "s_nop", "s_endpgm", "s_sleep", "s_setprio"):
                self.r = flat(R)
            else:
                self.w = R[0] if R else []; self.r = flat(R[1:])
                if "saveexec" in op: self.w = self.w + [("s", 126), ("s", 127)]
        else:
            self.kind = "other"

    def slots(self):
        if self.op == "s_nop":
            return int(self.ops[0], 0) + 1
        return 1

def need(prod, cons):
    n = 0
    pw = set(prod.w); cr = set(cons.r); cw = set(cons.w)
    raw = pw & cr
    rawv = {x for x in raw if x[0] == "v"}
    raws = {x for x in raw if x[0] == "s"}
    if prod.kind == "valu":
        if rawv:
            if cons.kind == "mfma": n = max(n, 2)
            if cons.kind == "valu":
                if cons.dpp: n = max(n, 2)
                if cons.op.startswith("v_readlane") or cons.op.startswith("v_readfirstlane"): n = max(n, 1)
                if cons.op.startswith("v_permlane"): n = max(n, 2)
                if prod.op.startswith(TRANS) : n = max(n, 1)
            if prod.op.startswith(TRANS) and cons.kind in ("ds", "vmem"): n = max(n, 1)
        if raws:
            if cons.kind == "valu": n = max(n, 2)
            if cons.kind == "valu" and (cons.op.startswith("v_readlane") or cons.op.startswith("v_writelane")): n = max(n, 4)
            if cons.kind == "vmem": n = max(n, 5)
            if cons.kind in ("salu", "smem"): n = max(n, 2)
        if ("s", 126) in pw:
            if cons.kind == "valu" and cons.dpp: n = max(n, 5)
            if cons.kind == "mfma": n = max(n, 4)
            if cons.kind == "valu" and cons.op.startswith(("v_readlane", "v_readfirstlane", "v_writelane", "v_permlane")): n = max(n, 4)
    if prod.kind == "mfma":
        p = prod.passes
        tab_ab = {2: 5, 4: 8, 8: 12, 16: 20}[p]
        tab_cov = {2: 4, 4: 6, 8: 10, 16: 18}[p]
        if cons.kind == "mfma":
            if pw & set(cons.rA): n = max(n, tab_ab)
            if pw & set(cons.rC):
                if set(cons.rC) == pw and cons.passes == p: n = max(n, 2 if p == 2 else 0)
                else: n = max(n, tab_cov)
            if (pw & cw) and not (pw & set(cons.rC)): n = max(n, tab_ab)
        else:
            if (pw & cr) or (pw & cw): n = max(n, tab_ab)
        if cons.kind == "valu" and (set(prod.rC) & cw): n = max(n, {2: 1, 4: 3, 8: 7, 16: 15}[p])
        if cons.kind in ("ds", "vmem") and (set(prod.rC) & cw): n = max(n, {2: 1, 4: 3, 8: 7, 16: 15}[p])
    if prod.kind == "salu":
        if ("s", 124) in pw and cons.kind == "vmem" and getattr(cons, "lds", False): n = max(n, 1)
    if prod.kind == "vmem" and getattr(prod, "widestore", False):
        if set(prod.sdata) & cw: n = max(n, 2)
    return n

class Asm:
    def __init__(self):
        self.lines = []
    def raw(self, s): self.lines.append(("raw", s))
    def label(self, s): self.lines.append(("label", s))
    def __call__(self, s):
        for l in s.strip().split("\n"):
            l = l.strip()
            if not l: continue
            if l.startswith(";"):
                self.lines.append(("raw", "    " + l)); continue
            if l.endswith(":"):
                self.label(l[:-1]); continue
            self.lines.append(("ins", Ins(l)))
    def render(self):
        out = []
        hist = []
        MAXD = 21
        for kind, o in self.lines:
            if kind == "raw":
                out.append(o); continue
            if kind == "label":
                out.append(o + ":"); continue
            ins = o
            req = 0
            for (p, d) in hist:
                n = need(p, ins)
                if n > d: req = max(req, n - d)
            if req > 0:
                r = req
                while r > 0:
                    k = min(r, 16)
                    out.append(f"    s_nop {k-1}")
                    r -= k
                hist = [(p, d + req) for (p, d) in hist]
            out.append("    " + ins.text)
            s = ins.slots()
            hist = [(p, d + s) for (p, d) in hist if d + s < MAXD]
            hist.append((ins, 0))
            if ins.op in ("s_branch", "s_endpgm"):
                hist = []
        return "\n".join(out) + "\n"
```

```python
import sys, os
from asmlib import Asm
KN = "recurrent_scan__sliding_block_cached__mixer_channel_mlp__decode_kernel"
OUT = sys.argv[1] if len(sys.argv) > 1 else "k.s"
OPT = dict(a.split("=") for a in sys.argv[2:])
STAMPS = int(OPT.get("stamps", 0))
KVPOL = OPT.get("kvpol", "nt")
WPOL = OPT.get("wpol", "nt")
def pol(p): return "" if p == "none" else " " + p.replace("_", " ")
KVP = pol(KVPOL); WP = pol(WPOL)

L_WQ = 0; L_W1 = 16384; L_XN = 32768; L_Y = 36864; L_Q = 40960; L_P = 41984
L_MX = 46080; L_LS = 46144; L_H = 46208; L_FLG = 46720; LDS_SIZE = 46976
L_RED1 = 0; L_RED2 = 8192; L_RED3 = 24576
F_Q = L_FLG + 0; F_MX = L_FLG + 4; F_P = L_FLG + 8; F_VI = L_FLG + 12; F_H = L_FLG + 16; F_C0 = L_FLG + 20
W_Q = 0; W_H = 0x8000; W_EP = 0xC000; W_FQ = 0x10000; W_FH = 0x30000; W_OREC = 0x100000; W_SP = 0x200000; W_MP = 0x280000; W_MPX = 0x300000; W_STAMP = 0x400000
LCG_A = 0x915f77f5; LCG_C = 0x3c6ef35f
SPIN_MAX = 1 << 16
LOG2E = 0x3fb8aa3b
SCALE = 0x3db504f3
EPS = 0x3727c5ac

a = Asm()
VST = 156
def stamp(i):
    if STAMPS:
        a(f"""
        s_memrealtime s[100:101]
        s_waitcnt lgkmcnt(0)
        v_writelane_b32 v{VST}, s100, {i}
        """)
def stamp_store(ws):
    if STAMPS:
        a(f"""
        s_mul_i32 s100, s2, 10
        s_add_u32 s100, s100, s3
        s_lshl_b32 s100, s100, 6
        s_add_u32 s100, s100, {W_STAMP}
        s_getreg_b32 s101, hwreg(HW_REG_XCC_ID)
        v_writelane_b32 v{VST}, s101, 15
        v_lshlrev_b32 v{VST+1}, 2, v0
        v_add_u32 v{VST+1}, s100, v{VST+1}
        s_mov_b64 exec, 0xffff
        global_store_dword v{VST+1}, v{VST}, s[{ws}:{ws+1}]
        s_waitcnt vmcnt(0)
        """)

uid = [0]
def lbl(p):
    uid[0] += 1
    return f"L_{p}_{uid[0]}"

def lds_spin(vaddr, off, n, vt, st):
    l = lbl("ls")
    a(f"""
    {l}:
    ds_read_b32 v{vt}, v{vaddr} offset:{off}
    s_waitcnt lgkmcnt(0)
    v_readfirstlane_b32 s{st}, v{vt}
    s_cmp_ge_u32 s{st}, {n}
    s_cbranch_scc1 {l}_ok
    s_sleep 1
    s_branch {l}
    {l}_ok:
    """)

def lds_inc(vzero, vone, off):
    a(f"""
    s_waitcnt lgkmcnt(0)
    s_mov_b64 exec, 1
    ds_add_u32 v{vzero}, v{vone} offset:{off}
    s_mov_b64 exec, -1
    """)

def epoch_load(ws, dst):
    a(f"s_load_dword s{dst}, s[{ws}:{ws+1}], {W_EP}")
def epoch_tag(dst):
    a(f"""
    s_mul_i32 s{dst}, s{dst}, {LCG_A:#x}
    s_add_u32 s{dst}, s{dst}, {LCG_C:#x}
    """)

def fpoll(base, off, n, tag, st, sc):
    l = lbl("gp")
    a(f"""
    s_mov_b32 s{sc}, 0
    {l}:
    """)
    for i in range(n):
        a(f"s_load_dword s{st+i}, s[{base}:{base+1}], {off + 128*i} glc")
    a("s_waitcnt lgkmcnt(0)")
    for i in range(n):
        a(f"s_xor_b32 s{st+i}, s{st+i}, s{tag}")
    for i in range(1, n):
        a(f"s_or_b32 s{st}, s{st}, s{st+i}")
    a(f"""
    s_cmp_eq_u32 s{st}, 0
    s_cbranch_scc1 {l}_ok
    s_add_u32 s{sc}, s{sc}, 1
    s_cmp_lt_u32 s{sc}, {SPIN_MAX}
    s_cbranch_scc0 {l}_ok
    s_sleep 8
    s_branch {l}
    {l}_ok:
    """)

def bf16r(dst, src):
    a(f"""
    v_cvt_pk_bf16_f32 v{dst}, v{src}, v{src}
    v_and_b32 v{dst}, 0xffff0000, v{dst}
    """)

def layernorm(X, F, T, S, OUTP, perm):
    for d in range(16):
        a(f"v_lshlrev_b32 v{F+2*d}, 16, v{X+d}")
        a(f"v_and_b32 v{F+2*d+1}, 0xffff0000, v{X+d}")
    for i in range(8):
        a(f"v_pk_add_f32 v[{T+2*i}:{T+2*i+1}], v[{F+4*i}:{F+4*i+1}], v[{F+4*i+2}:{F+4*i+3}]")
    for n in (4, 2, 1):
        for i in range(n):
            a(f"v_pk_add_f32 v[{T+2*i}:{T+2*i+1}], v[{T+2*i}:{T+2*i+1}], v[{T+2*(i+n)}:{T+2*(i+n)+1}]")
    a(f"v_add_f32 v{S}, v{T}, v{T+1}")
    for r in (8, 4, 2, 1):
        a(f"v_add_f32_dpp v{S}, v{S}, v{S} row_ror:{r} row_mask:0xf bank_mask:0xf")
    a(f"v_mul_f32 v{S}, 0xbb000000, v{S}")
    a(f"v_mov_b32 v{S+1}, v{S}")
    for i in range(4):
        a(f"v_pk_add_f32 v[{T+8+2*i}:{T+9+2*i}], v[{F+2*i}:{F+2*i+1}], v[{S}:{S+1}]")
    for i in range(4):
        a(f"v_pk_mul_f32 v[{T+2*i}:{T+2*i+1}], v[{T+8+2*i}:{T+9+2*i}], v[{T+8+2*i}:{T+9+2*i}]")
    for j in range(1, 4):
        for i in range(4):
            a(f"v_pk_add_f32 v[{T+8+2*i}:{T+9+2*i}], v[{F+8*j+2*i}:{F+8*j+2*i+1}], v[{S}:{S+1}]")
        for i in range(4):
            a(f"v_pk_fma_f32 v[{T+2*i}:{T+2*i+1}], v[{T+8+2*i}:{T+9+2*i}], v[{T+8+2*i}:{T+9+2*i}], v[{T+2*i}:{T+2*i+1}]")
    for n in (2, 1):
        for i in range(n):
            a(f"v_pk_add_f32 v[{T+2*i}:{T+2*i+1}], v[{T+2*i}:{T+2*i+1}], v[{T+2*(i+n)}:{T+2*(i+n)+1}]")
    a(f"v_add_f32 v{S+2}, v{T}, v{T+1}")
    for r in (8, 4, 2, 1):
        a(f"v_add_f32_dpp v{S+2}, v{S+2}, v{S+2} row_ror:{r} row_mask:0xf bank_mask:0xf")
    a(f"v_mul_f32 v{S+2}, 0x3b000000, v{S+2}")
    bf16r(S + 2, S + 2)
    a(f"v_add_f32 v{S+2}, {EPS:#x}, v{S+2}")
    bf16r(S + 2, S + 2)
    a(f"v_sqrt_f32 v{S+2}, v{S+2}")
    bf16r(S + 2, S + 2)
    a(f"v_rcp_f32 v{S+4}, v{S+2}")
    bf16r(S, S)
    a(f"v_mov_b32 v{S+1}, v{S}")
    a(f"v_mov_b32 v{S+5}, v{S+4}")
    for d0 in range(0, 16, 4):
        for d in range(d0, d0 + 4):
            t = T + 2 * (d - d0)
            a(f"v_pk_add_f32 v[{t}:{t+1}], v[{F+2*d}:{F+2*d+1}], v[{S}:{S+1}]")
        for d in range(d0, d0 + 4):
            t = T + 2 * (d - d0)
            a(f"v_cvt_pk_bf16_f32 v{T+8+d-d0}, v{t}, v{t+1}")
        for d in range(d0, d0 + 4):
            t = T + 2 * (d - d0)
            a(f"v_lshlrev_b32 v{t}, 16, v{T+8+d-d0}")
            a(f"v_and_b32 v{t+1}, 0xffff0000, v{T+8+d-d0}")
        for d in range(d0, d0 + 4):
            t = T + 2 * (d - d0)
            a(f"v_pk_mul_f32 v[{t}:{t+1}], v[{t}:{t+1}], v[{S+4}:{S+5}]")
        for d in range(d0, d0 + 4):
            t = T + 2 * (d - d0)
            o = (4 * ((d >> 1) & 3) + 2 * (d >> 3) + (d & 1)) if perm else d
            a(f"v_cvt_pk_bf16_f32 v{OUTP+o}, v{t}, v{t+1}")

def tile_gemv(l_act, l_w, ACC, A, B, va, vb):
    for half in range(2):
        for s in range(8):
            ss = half * 8 + s
            a(f"ds_read_b64_tr_b16 v[{B+4*s}:{B+4*s+1}], v{vb} offset:{l_w + ss*1024}")
            a(f"ds_read_b64_tr_b16 v[{B+4*s+2}:{B+4*s+3}], v{vb} offset:{l_w + ss*1024 + 512}")
            a(f"ds_read_b128 v[{A+4*s}:{A+4*s+3}], v{va} offset:{l_act + ss*64}")
        a("s_waitcnt lgkmcnt(0)")
        for s in range(8):
            c = "0" if (half == 0 and s == 0) else f"v[{ACC}:{ACC+3}]"
            a(f"v_mfma_f32_16x16x32_bf16 v[{ACC}:{ACC+3}], v[{A+4*s}:{A+4*s+3}], v[{B+4*s}:{B+4*s+3}], {c}")

def publish16(ACC, T, base, rowstride):
    for r in range(4):
        a(f"v_mov_b32_dpp v{T+r}, v{ACC+r} quad_perm:[1,0,3,2] row_mask:0xf bank_mask:0xf")
    for r in range(4):
        a(f"v_cvt_pk_bf16_f32 v{T+r}, v{ACC+r}, v{T+r}")
    for r in range(4):
        for e in range(8):
            a(f"v_readlane_b32 s{64+8*r+e}, v{T+r}, {2*e}")
    for r in range(4):
        for q in range(4):
            a(f"s_atomic_swap_x2 s[{64+8*r+2*q}:{65+8*r+2*q}], s[{base}:{base+1}], {r*rowstride + q*8} glc")

a.raw(f"; @launch grid=(256,1,1) block=(640,1,1) lds={LDS_SIZE}")
a.raw('.amdgcn_target "amdgcn-amd-amdhsa--gfx950"')
a.raw(".text")
a.raw(f".globl {KN}")
a.raw(".p2align 8")
a.raw(f".type {KN},@function")
a.label(KN)
a(f"""
s_cmp_ge_u32 s2, 256
s_cbranch_scc1 L_end
s_load_dwordx16 s[36:51], s[0:1], 0
s_load_dwordx8 s[52:59], s[0:1], 64
s_load_dwordx2 s[60:61], s[0:1], 96
v_lshrrev_b32 v1, 6, v0
v_and_b32 v0, 63, v0
v_readfirstlane_b32 s3, v1
s_and_b32 s4, s2, 7
s_lshr_b32 s5, s2, 3
""")
if STAMPS:
    a(f"v_mov_b32 v{VST}, 0")
stamp(0)
a(f"""
s_cmp_eq_u32 s3, 0
s_cbranch_scc1 L_C0
s_cmp_eq_u32 s3, 1
s_cbranch_scc1 L_C1
s_cmp_lt_u32 s3, 6
s_cbranch_scc1 L_K
s_branch L_V
""")
a.label("L_C0")
X, F, T, S, OP = 16, 32, 64, 80, 88
a(f"""
v_mov_b32 v2, 0
v_lshlrev_b32 v3, 2, v0
ds_write_b32 v3, v2 offset:{L_FLG}
v_lshlrev_b32 v4, 6, v0
v_lshrrev_b32 v5, 1, v0
v_lshlrev_b32 v5, 13, v5
v_and_b32 v6, 1, v0
v_lshl_add_u32 v5, v6, 4, v5
s_lshl_b32 s6, s4, 10
s_lshl_b32 s7, s5, 5
s_add_u32 s6, s6, s7
v_add_u32 v5, s6, v5
v_lshlrev_b32 v7, 4, v0
v_mov_b32 v8, -1
v_mov_b32 v9, -1
v_mov_b32 v10, -1
v_mov_b32 v11, -1
s_lshl_b32 s13, s4, 5
s_add_u32 s13, s13, s5
s_lshl_b32 s8, s13, 12
s_add_u32 s8, s8, {W_OREC}
v_add_u32 v12, s8, v7
s_and_b32 s8, s5, 3
s_lshl_b32 s8, s8, 6
s_lshr_b32 s9, s13, 2
s_add_u32 s8, s8, s9
s_lshl_b32 s8, s8, 11
s_add_u32 s8, s8, {W_SP}
v_add_u32 v13, s8, v7
s_mul_i32 s8, s4, 14
s_add_u32 s8, s8, s5
s_sub_u32 s8, s8, 14
s_and_b32 s9, s8, 3
s_lshl_b32 s9, s9, 5
s_lshr_b32 s8, s8, 2
s_add_u32 s8, s8, s9
s_lshl_b32 s8, s8, 11
s_add_u32 s8, s8, {W_MP}
s_lshl_b32 s9, s13, 11
s_add_u32 s9, s9, {W_MPX}
s_sub_u32 s10, s5, 14
s_cmp_lt_u32 s10, 14
s_cselect_b32 s8, s8, s9
v_add_u32 v14, s8, v7
s_waitcnt lgkmcnt(0)
""")
epoch_load(60, 14)
for i in range(4):
    a(f"global_load_dwordx4 v[{X+4*i}:{X+4*i+3}], v4, s[36:37] offset:{16*i}")
for t in range(16):
    a(f"s_mov_b32 m0, {L_WQ + t*1024}")
    a(f"global_load_lds_dwordx4 v5, s[42:43]{WP}")
    if t < 15: a(f"v_add_u32 v5, {32*8192:#x}, v5")
for i in range(4):
    a(f"global_store_dwordx4 v12, v[8:11], s[60:61] offset:{1024*i} sc1")
for i in range(2):
    a(f"global_store_dwordx4 v13, v[8:11], s[60:61] offset:{1024*i} sc1")
for i in range(2):
    a(f"global_store_dwordx4 v14, v[8:11], s[60:61] offset:{1024*i} sc1")
a("s_barrier")
a(f"""
s_add_u32 s8, s60, s6
s_addc_u32 s9, s61, 0
s_lshl_b32 s10, s13, 7
s_add_u32 s10, s60, s10
s_addc_u32 s11, s61, 0
v_and_b32 v5, 3, v0
v_lshlrev_b32 v5, 10, v5
v_lshrrev_b32 v6, 4, v0
v_lshl_add_u32 v5, v6, 4, v5
v_lshlrev_b32 v6, 3, v0
s_waitcnt vmcnt(24)
""")
stamp(1)
layernorm(X, F, T, S, OP, True)
for g in range(4):
    a(f"ds_write_b128 v4, v[{OP+4*g}:{OP+4*g+3}] offset:{L_XN + 16*g}")
stamp(2)
a("s_waitcnt vmcnt(8) lgkmcnt(0)")
epoch_tag(14)
stamp(3)
tile_gemv(L_XN, L_WQ, 8, 16, 48, 5, 6)
publish16(8, 12, 8, 8192)
stamp(4)
a(f"""
v_mov_b32 v2, 0
v_mov_b32 v3, 1
s_waitcnt vmcnt(0) lgkmcnt(0)
s_atomic_swap s14, s[10:11], {W_FQ}
s_atomic_swap s14, s[10:11], {W_FQ+32768}
s_atomic_swap s14, s[10:11], {W_FQ+65536}
s_atomic_swap s14, s[10:11], {W_FQ+98304}
s_mov_b64 exec, 1
ds_write_b32 v2, v3 offset:{F_C0}
s_mov_b64 exec, -1
""")
stamp(5)
stamp_store(60)
a("s_endpgm")

a.label("L_C1")
a(f"""
s_mul_i32 s6, s4, 14
s_add_u32 s6, s6, s5
s_cmp_lt_u32 s5, 14
s_cbranch_scc1 L_C1_w1
s_waitcnt lgkmcnt(0)
s_barrier
s_cmp_lt_u32 s5, 28
s_cbranch_scc0 L_end
s_sub_u32 s6, s6, 14
s_lshr_b32 s7, s6, 2
s_lshl_b32 s8, s7, 9
s_add_u32 s8, s60, s8
s_addc_u32 s9, s61, 0
s_lshl_b32 s10, s7, 7
s_add_u32 s10, s60, s10
s_addc_u32 s11, s61, 0
s_mov_b64 s[14:15], s[60:61]
""")
epoch_load(60, 16)
a("s_waitcnt lgkmcnt(0)")
epoch_tag(16)
a("s_sleep 32")
fpoll(8, W_FH, 4, 16, 20, 13)
stamp(1)
for rnd in range(2):
    for bb in range(2):
        b = rnd * 2 + bb
        for q in range(2):
            a(f"s_load_dwordx16 s[{36+32*bb+16*q}:{51+32*bb+16*q}], s[10:11], {W_H + b*3584 + q*64}")
    a("s_waitcnt lgkmcnt(0)")
    for i in range(64):
        a(f"v_writelane_b32 v{4+rnd}, s{36+i}, {i}")
a(f"""
v_lshlrev_b32 v3, 2, v0
v_mov_b32 v6, 0
v_mov_b32 v7, 1
ds_write_b32 v3, v4 offset:{L_H}
ds_write_b32 v3, v5 offset:{L_H+256}
""")
lds_inc(6, 7, F_H)
stamp(2)
stamp_store(14)
a("s_endpgm")
a.label("L_C1_w1")
a(f"""
v_lshlrev_b32 v4, 6, v0
v_lshrrev_b32 v5, 1, v0
v_mul_u32_u24 v5, 3584, v5
v_and_b32 v6, 1, v0
v_lshl_add_u32 v5, v6, 4, v5
s_lshl_b32 s7, s6, 5
v_add_u32 v5, s7, v5
v_and_b32 v7, 15, v0
v_lshlrev_b32 v7, 1, v7
v_add_u32 v7, s7, v7
s_waitcnt lgkmcnt(0)
""")
for i in range(4):
    a(f"global_load_dwordx4 v[{X+4*i}:{X+4*i+3}], v4, s[36:37] offset:{16*i}")
a("global_load_ushort v15, v7, s[50:51]")
epoch_load(60, 14)
for t in range(16):
    a(f"s_mov_b32 m0, {L_W1 + t*1024}")
    a(f"global_load_lds_dwordx4 v5, s[48:49]{WP}")
    if t < 15: a(f"v_add_u32 v5, {32*3584:#x}, v5")
a("s_barrier")
a(f"""
s_add_u32 s8, s60, s7
s_addc_u32 s9, s61, 0
s_add_u32 s8, s8, {W_H}
s_addc_u32 s9, s9, 0
s_lshl_b32 s10, s6, 7
s_add_u32 s10, s60, s10
s_addc_u32 s11, s61, 0
v_and_b32 v5, 3, v0
v_lshlrev_b32 v5, 10, v5
v_lshrrev_b32 v6, 4, v0
v_lshl_add_u32 v5, v6, 4, v5
v_lshlrev_b32 v6, 3, v0
s_waitcnt vmcnt(17)
""")
stamp(1)
layernorm(X, F, T, S, X, False)
layernorm(X, F, T, S, OP, True)
for g in range(4):
    a(f"ds_write_b128 v4, v[{OP+4*g}:{OP+4*g+3}] offset:{L_Y + 16*g}")
stamp(2)
a("s_waitcnt vmcnt(0) lgkmcnt(0)")
a("v_lshlrev_b32 v104, 16, v15")
epoch_tag(14)
tile_gemv(L_Y, L_W1, 8, 16, 48, 5, 6)
for r in range(4):
    bf16r(8 + r, 8 + r)
for r in range(4):
    a(f"v_add_f32 v{8+r}, v{8+r}, v104")
for r in range(4):
    bf16r(8 + r, 8 + r)
import math, struct
def f2u(x): return struct.unpack("<I", struct.pack("<f", x))[0]
c1 = -2 * math.log2(math.e) * math.sqrt(2 / math.pi)
c2 = c1 * 0.044715
a(f"s_mov_b32 s12, {f2u(c2):#x}")
a(f"v_mov_b32 v105, {f2u(c1):#x}")
for r in range(4):
    a(f"v_mul_f32 v{16+r}, v{8+r}, v{8+r}")
for r in range(4):
    a(f"v_fma_f32 v{16+r}, v{16+r}, s12, v105")
for r in range(4):
    a(f"v_mul_f32 v{16+r}, v{16+r}, v{8+r}")
for r in range(4):
    a(f"v_exp_f32 v{16+r}, v{16+r}")
for r in range(4):
    a(f"v_add_f32 v{16+r}, 1.0, v{16+r}")
for r in range(4):
    a(f"v_rcp_f32 v{16+r}, v{16+r}")
for r in range(4):
    a(f"v_mul_f32 v{8+r}, v{8+r}, v{16+r}")
publish16(8, 12, 8, 3584)
stamp(4)
a(f"""
s_waitcnt lgkmcnt(0)
s_atomic_swap s14, s[10:11], {W_FH}
""")
stamp(5)
stamp_store(60)
a("s_endpgm")

def kv_setup(wbase, ptr):
    a(f"""
    s_sub_u32 s6, s3, {wbase}
    s_lshr_b32 s7, s5, 3
    s_and_b32 s8, s5, 7
    s_lshl_b32 s9, s7, 24
    s_lshl_b32 s10, s4, 21
    s_add_u32 s9, s9, s10
    s_lshl_b32 s10, s8, 16
    s_add_u32 s9, s9, s10
    s_add_u32 s9, s9, {6144*256}
    s_lshl_b32 s10, s5, 1
    s_lshl_b32 s11, s6, 4
    s_add_u32 s10, s10, s11
    v_lshrrev_b32 v1, 4, v0
    v_and_b32 v2, 3, v0
    v_bfe_u32 v3, v0, 2, 2
    v_mov_b32 v4, 0
    v_mov_b32 v5, 1
    s_waitcnt lgkmcnt(0)
    s_mov_b64 s[12:13], s[44:45]
    s_mov_b64 s[14:15], s[52:53]
    s_mov_b64 s[16:17], s[56:57]
    s_mov_b64 s[18:19], s[58:59]
    s_mov_b64 s[20:21], s[60:61]
    s_add_u32 s22, s{ptr}, s9
    s_addc_u32 s23, s{ptr+1}, 0
    """)

def kv_loads(voff, D):
    for t in range(16):
        a(f"""
        s_add_u32 s11, s10, {t}
        s_and_b32 s11, s11, 63
        s_lshl_b32 s11, s11, 10
        v_add_u32 v7, s11, v{voff}
        global_load_dwordx4 v[{D+4*t}:{D+4*t+3}], v7, s[22:23]{KVP}
        """)

def wo_addr(wprime_s, vdst):
    a(f"""
    s_lshl_b32 s24, s4, 3
    s_lshr_b32 s25, s5, 2
    s_add_u32 s24, s24, s25
    s_lshl_b32 s24, s24, 6
    s_lshr_b32 s25, s{wprime_s}, 1
    s_lshl_b32 s25, s25, 4
    s_add_u32 s24, s24, s25
    s_and_b32 s25, s{wprime_s}, 1
    s_lshl_b32 s25, s25, 2
    s_add_u32 s24, s24, s25
    s_lshl_b32 s24, s24, 10
    s_and_b32 s25, s5, 3
    s_lshl_b32 s25, s25, 8
    s_add_u32 s24, s24, s25
    v_and_b32 v{vdst}, 15, v0
    v_lshlrev_b32 v{vdst}, 4, v{vdst}
    v_lshl_add_u32 v{vdst}, v1, 10, v{vdst}
    v_add_u32 v{vdst}, s24, v{vdst}
    v_add_u32 v{vdst+1}, 0x2000, v{vdst}
    """)

def masks(m0, m1):
    a(f"""
    v_mov_b32 v{m0}, 0xffff
    v_and_b32 v{m1}, 1, v2
    v_lshlrev_b32 v{m1}, 4, v{m1}
    v_lshlrev_b32 v{m0}, v{m1}, v{m0}
    v_cmp_gt_u32 vcc, 2, v2
    v_cndmask_b32 v{m1}, v{m0}, v4, vcc
    v_cndmask_b32 v{m0}, v4, v{m0}, vcc
    """)

WO = 144
W2 = 112
M0, M1 = 10, 11
ACC = 12
ACC2 = 64

def wo_stage(wp):
    R = 32
    l = lbl("op")
    a(f"""
    s_lshl_b32 s24, s4, 17
    s_lshr_b32 s25, s5, 2
    s_lshl_b32 s25, s25, 9
    s_add_u32 s24, s24, s25
    s_lshl_b32 s25, s{wp}, 6
    s_add_u32 s24, s24, s25
    s_add_u32 s24, s24, {W_OREC}
    v_lshlrev_b32 v30, 15, v3
    v_lshl_add_u32 v30, v2, 13, v30
    v_lshl_add_u32 v30, v1, 4, v30
    v_add_u32 v30, s24, v30
    v_add_u32 v29, 0x1000, v30
    s_mov_b32 s26, 0
    {l}:
    global_load_dwordx4 v[{R}:{R+3}], v30, s[20:21] sc1
    global_load_dwordx4 v[{R+4}:{R+7}], v29, s[20:21] sc1
    s_waitcnt vmcnt(0)
    v_max3_u32 v31, v{R}, v{R+1}, v{R+2}
    v_max3_u32 v31, v31, v{R+3}, v{R+4}
    v_max3_u32 v31, v31, v{R+5}, v{R+6}
    v_max_u32 v31, v31, v{R+7}
    v_cmp_eq_u32 vcc, -1, v31
    s_cbranch_vccz {l}_ok
    s_add_u32 s26, s26, 1
    s_cmp_lt_u32 s26, {SPIN_MAX}
    s_cbranch_scc1 {l}
    {l}_ok:
    """)
    stamp(9)
    a(f"""
    s_mov_b32 s24, {LOG2E:#x}
    v_max_f32 v40, v{R+2}, v{R+6}
    v_max_f32_dpp v40, v40, v40 quad_perm:[1,0,3,2] row_mask:0xf bank_mask:0xf
    v_max_f32_dpp v40, v40, v40 quad_perm:[2,3,0,1] row_mask:0xf bank_mask:0xf
    v_sub_f32 v41, v{R+2}, v40
    v_sub_f32 v42, v{R+6}, v40
    v_mul_f32 v41, s24, v41
    v_mul_f32 v42, s24, v42
    v_exp_f32 v41, v41
    v_exp_f32 v42, v42
    v_mul_f32 v43, v41, v{R+3}
    v_mul_f32 v44, v41, v{R}
    v_mul_f32 v45, v41, v{R+1}
    v_fmac_f32 v43, v42, v{R+7}
    v_fmac_f32 v44, v42, v{R+4}
    v_fmac_f32 v45, v42, v{R+5}
    v_add_f32_dpp v43, v43, v43 quad_perm:[1,0,3,2] row_mask:0xf bank_mask:0xf
    v_add_f32_dpp v44, v44, v44 quad_perm:[1,0,3,2] row_mask:0xf bank_mask:0xf
    v_add_f32_dpp v45, v45, v45 quad_perm:[1,0,3,2] row_mask:0xf bank_mask:0xf
    v_add_f32_dpp v43, v43, v43 quad_perm:[2,3,0,1] row_mask:0xf bank_mask:0xf
    v_add_f32_dpp v44, v44, v44 quad_perm:[2,3,0,1] row_mask:0xf bank_mask:0xf
    v_add_f32_dpp v45, v45, v45 quad_perm:[2,3,0,1] row_mask:0xf bank_mask:0xf
    v_rcp_f32 v43, v43
    v_mul_f32 v44, v44, v43
    v_mul_f32 v45, v45, v43
    v_cvt_pk_bf16_f32 v44, v44, v44
    v_cvt_pk_bf16_f32 v45, v45, v45
    v_and_b32 v46, v44, v{M0}
    v_and_b32 v47, v44, v{M1}
    v_and_b32 v48, v45, v{M0}
    v_and_b32 v49, v45, v{M1}
    v_mfma_f32_16x16x16_bf16 v[{ACC}:{ACC+3}], v[{WO}:{WO+1}], v[46:47], 0
    v_mfma_f32_16x16x16_bf16 v[{ACC+4}:{ACC+7}], v[{WO+2}:{WO+3}], v[46:47], 0
    v_mfma_f32_16x16x16_bf16 v[{ACC}:{ACC+3}], v[{WO+4}:{WO+5}], v[48:49], v[{ACC}:{ACC+3}]
    v_mfma_f32_16x16x16_bf16 v[{ACC+4}:{ACC+7}], v[{WO+6}:{WO+7}], v[48:49], v[{ACC+4}:{ACC+7}]
    s_lshl_b32 s24, s{wp}, 11
    v_lshlrev_b32 v30, 4, v0
    v_add_u32 v30, s24, v30
    ds_write_b128 v30, v[{ACC}:{ACC+3}] offset:{L_RED2}
    ds_write_b128 v30, v[{ACC+4}:{ACC+7}] offset:{L_RED2+1024}
    """)

def red_publish(lred, nsrc, w_s, wbase, rb_s, cg_s, rbpad_log2):
    a(f"""
    s_lshl_b32 s24, s{w_s}, 7
    v_and_b32 v30, 1, v0
    v_lshlrev_b32 v30, 10, v30
    v_bfe_u32 v31, v0, 3, 2
    v_lshl_add_u32 v30, v31, 8, v30
    v_lshrrev_b32 v31, 5, v0
    v_lshl_add_u32 v30, v31, 6, v30
    v_bfe_u32 v31, v0, 1, 2
    v_lshl_add_u32 v30, v31, 4, v30
    v_add_u32 v30, s24, v30
    """)
    for w in range(nsrc):
        a(f"ds_read_b128 v[{32+4*w}:{35+4*w}], v30 offset:{lred + 2048*w}")
    a(f"""
    s_lshl_b32 s24, s{cg_s}, {rbpad_log2}
    s_add_u32 s24, s24, s{rb_s}
    s_lshl_b32 s24, s24, 11
    s_lshl_b32 s25, s{w_s}, 10
    s_add_u32 s24, s24, s25
    s_add_u32 s24, s24, {wbase}
    v_lshlrev_b32 v31, 4, v0
    v_add_u32 v31, s24, v31
    s_waitcnt lgkmcnt(0)
    """)
    n = nsrc
    while n > 1:
        h = n // 2
        for w in range(h):
            for p in range(2):
                x = 32 + 4 * w + 2 * p; y = 32 + 4 * (w + h) + 2 * p
                a(f"v_pk_add_f32 v[{x}:{x+1}], v[{x}:{x+1}], v[{y}:{y+1}]")
        n = h
    a(f"global_store_dwordx4 v31, v[32:35], s[20:21] sc1")

a.label("L_K")
kv_setup(2, 38)
KD = 80
DD = 16
a(f"""
v_lshlrev_b32 v6, 8, v3
v_lshl_add_u32 v6, v1, 6, v6
v_lshl_add_u32 v6, v2, 4, v6
s_bfe_u32 s25, s2, 0x20002
s_bfe_u32 s26, s2, 0x20004
s_lshl_b32 s27, s25, 7
s_and_b32 s28, s2, 3
s_lshl_b32 s28, s28, 5
s_add_u32 s27, s27, s28
s_lshr_b32 s28, s2, 6
s_add_u32 s27, s27, s28
v_and_b32 v8, 1, v1
v_lshlrev_b32 v8, 2, v8
v_lshl_add_u32 v8, v2, 3, v8
v_add_u32 v8, s27, v8
v_lshlrev_b32 v8, 1, v8
s_lshl_b32 s26, s26, 10
v_add_u32 v9, s26, v8
s_barrier
global_load_ushort v152, v9, s[36:37]
global_load_ushort v153, v8, s[54:55]
v_mov_b32 v154, v9
""")
epoch_load(20, 9)
kv_loads(6, KD)
stamp(1)
a(f"""
s_lshl_b32 s24, s4, 12
s_lshl_b32 s25, s6, 10
s_add_u32 s24, s24, s25
s_lshl_b32 s25, s7, 15
s_add_u32 s24, s24, s25
s_add_u32 s24, s20, s24
s_addc_u32 s25, s21, 0
s_lshl_b32 s26, s7, 13
s_lshl_b32 s27, s4, 10
s_add_u32 s26, s26, s27
s_lshl_b32 s27, s6, 8
s_add_u32 s26, s26, s27
s_add_u32 s26, s20, s26
s_addc_u32 s27, s21, 0
""")
a("s_waitcnt lgkmcnt(0)")
epoch_tag(9)
lds_spin(4, F_C0, 1, 10, 28)
fpoll(24, W_FQ, 8, 9, 36, 29)
stamp(2)
for q in range(4):
    a(f"s_load_dwordx16 s[{36+16*q}:{51+16*q}], s[26:27], {W_Q + 64*q}")
a(f"""
s_lshl_b32 s28, s6, 8
v_lshlrev_b32 v8, 2, v0
v_add_u32 v8, s28, v8
v_lshlrev_b32 v9, 8, v3
v_lshl_add_u32 v9, v1, 6, v9
v_lshl_add_u32 v9, v2, 4, v9
v_and_b32 v10, 1, v0
v_cmp_eq_u32 s[30:31], 1, v10
v_and_b32 v10, 2, v0
v_cmp_eq_u32 s[32:33], 2, v10
s_waitcnt lgkmcnt(0)
""")
for i in range(64):
    a(f"v_writelane_b32 v10, s{36+i}, {i}")
a(f"ds_write_b32 v8, v10 offset:{L_Q}")
lds_inc(4, 5, F_Q)
lds_spin(4, F_Q, 4, 10, 28)
a(f"""
ds_read_b128 v[12:15], v9 offset:{L_Q}
s_waitcnt lgkmcnt(0)
""")
stamp(3)
for t in range(16):
    a(f"s_waitcnt vmcnt({15-t})")
    a(f"v_mfma_f32_16x16x32_bf16 v[{DD+4*t}:{DD+4*t+3}], v[{KD+4*t}:{KD+4*t+3}], v[12:15], 0")
stamp(4)
SC = 80
for t in range(16):
    d = DD + 4 * t
    a(f"v_cndmask_b32 v{d}, v{d}, v{d+1}, s[30:31]")
    a(f"v_cndmask_b32 v{d+2}, v{d+2}, v{d+3}, s[30:31]")
for t in range(16):
    d = DD + 4 * t
    a(f"v_cndmask_b32 v{SC+t}, v{d}, v{d+2}, s[32:33]")
for t in range(16):
    a(f"v_add_f32_dpp v{SC+t}, v{SC+t}, v{SC+t} quad_perm:[1,0,3,2] row_mask:0xf bank_mask:0xf")
for t in range(16):
    a(f"v_add_f32_dpp v{SC+t}, v{SC+t}, v{SC+t} quad_perm:[2,3,0,1] row_mask:0xf bank_mask:0xf")
a(f"v_mov_b32 v16, {SCALE:#x}")
a(f"v_mov_b32 v17, {SCALE:#x}")
for p in range(8):
    a(f"v_cvt_pk_bf16_f32 v{96+p}, v{SC+2*p}, v{SC+2*p+1}")
for p in range(8):
    a(f"v_lshlrev_b32 v{SC+2*p}, 16, v{96+p}")
    a(f"v_and_b32 v{SC+2*p+1}, 0xffff0000, v{96+p}")
for p in range(8):
    a(f"v_pk_mul_f32 v[{SC+2*p}:{SC+2*p+1}], v[{SC+2*p}:{SC+2*p+1}], v[16:17]")
for p in range(8):
    a(f"v_cvt_pk_bf16_f32 v{96+p}, v{SC+2*p}, v{SC+2*p+1}")
for p in range(8):
    a(f"v_lshlrev_b32 v{SC+2*p}, 16, v{96+p}")
    a(f"v_and_b32 v{SC+2*p+1}, 0xffff0000, v{96+p}")
a(f"v_max3_f32 v18, v{SC}, v{SC+1}, v{SC+2}")
a(f"v_max3_f32 v19, v{SC+3}, v{SC+4}, v{SC+5}")
a(f"v_max3_f32 v20, v{SC+6}, v{SC+7}, v{SC+8}")
a(f"v_max3_f32 v21, v{SC+9}, v{SC+10}, v{SC+11}")
a(f"v_max3_f32 v18, v18, v{SC+12}, v{SC+13}")
a(f"v_max3_f32 v19, v19, v{SC+14}, v{SC+15}")
a(f"v_max3_f32 v18, v18, v19, v20")
a(f"v_max_f32 v18, v18, v21")
def xrow(op, r, t):
    a(f"""
    v_mov_b32 v{t}, v{r}
    v_permlane32_swap_b32 v{r}, v{t}
    {op} v{r}, v{r}, v{t}
    v_mov_b32 v{t}, v{r}
    v_permlane16_swap_b32 v{r}, v{t}
    {op} v{r}, v{r}, v{t}
    """)
xrow("v_max_f32", 18, 19)
a(f"""
s_lshl_b32 s28, s6, 2
v_lshlrev_b32 v20, 4, v3
v_add_u32 v21, s28, v20
ds_write_b32 v21, v18 offset:{L_MX}
""")
lds_inc(4, 5, F_MX)
lds_spin(4, F_MX, 4, 19, 28)
a(f"""
ds_read_b128 v[24:27], v20 offset:{L_MX}
s_mov_b32 s28, {LOG2E:#x}
s_waitcnt lgkmcnt(0)
v_max3_f32 v18, v24, v25, v26
v_max_f32 v18, v18, v27
""")
for t in range(16):
    a(f"v_sub_f32 v{SC+t}, v{SC+t}, v18")
for t in range(16):
    a(f"v_mul_f32 v{SC+t}, s28, v{SC+t}")
for t in range(16):
    a(f"v_exp_f32 v{SC+t}, v{SC+t}")
for t in range(16):
    a(f"v_cvt_pk_bf16_f32 v{96+t}, v{SC+t}, v{SC+t}")
a(f"""
s_lshl_b32 s28, s6, 10
v_lshlrev_b32 v22, 8, v3
v_lshl_add_u32 v22, v1, 6, v22
v_add_u32 v22, s28, v22
s_mov_b32 s28, 0x11111111
s_mov_b32 s29, 0x11111111
s_mov_b64 exec, s[28:29]
""")
for q in range(4):
    a(f"ds_write_b128 v22, v[{96+4*q}:{99+4*q}] offset:{L_P + 16*q}")
a("s_mov_b64 exec, -1")
for p in range(4):
    a(f"v_pk_add_f32 v[{SC+2*p}:{SC+2*p+1}], v[{SC+2*p}:{SC+2*p+1}], v[{SC+8+2*p}:{SC+9+2*p}]")
for p in range(2):
    a(f"v_pk_add_f32 v[{SC+2*p}:{SC+2*p+1}], v[{SC+2*p}:{SC+2*p+1}], v[{SC+4+2*p}:{SC+5+2*p}]")
a(f"v_pk_add_f32 v[{SC}:{SC+1}], v[{SC}:{SC+1}], v[{SC+2}:{SC+3}]")
a(f"v_add_f32 v19, v{SC}, v{SC+1}")
xrow("v_add_f32", 19, 23)
a(f"ds_write_b32 v21, v19 offset:{L_LS}")
lds_inc(4, 5, F_P)
stamp(5)
wo_addr(6, 8)
masks(M0, M1)
a(f"""
s_bfe_u32 s24, s2, 0x20002
v_lshlrev_b32 v72, 2, v0
v_add_u32 v72, s24, v72
v_mul_u32_u24 v73, 4682, v72
v_lshrrev_b32 v73, 16, v73
v_mul_u32_u24 v73, 18, v73
v_add3_u32 v73, v73, v72, 14
v_cmp_gt_u32 vcc, 28, v0
v_cndmask_b32 v73, v72, v73, vcc
v_lshlrev_b32 v72, 7, v72
v_lshlrev_b32 v73, 7, v73
v_add_u32 v72, {W_FQ:#x}, v72
v_add_u32 v73, {W_FQ:#x}, v73
""")
lds_spin(4, F_VI, 4, 19, 28)
a(f"""
s_cmp_eq_u32 s6, 0
s_cbranch_scc0 L_K_nofl
global_load_dword v74, v72, s[20:21] sc1
global_load_dword v75, v73, s[20:21] sc1
L_K_nofl:
s_sub_u32 s34, s5, 14
s_cmp_lt_u32 s34, 14
s_cselect_b32 s35, 1, 0
s_cbranch_scc0 L_K_now2
""")
a(f"""
s_mul_i32 s24, s4, 14
s_add_u32 s34, s34, s24
s_lshr_b32 s24, s34, 2
s_lshl_b32 s24, s24, 6
s_lshl_b32 s25, s6, 4
s_add_u32 s24, s24, s25
s_lshl_b32 s24, s24, 10
s_and_b32 s25, s34, 3
s_lshl_b32 s25, s25, 8
s_add_u32 s24, s24, s25
v_and_b32 v19, 15, v0
v_lshlrev_b32 v19, 4, v19
v_lshl_add_u32 v19, v1, 11, v19
v_add_u32 v19, s24, v19
v_add_u32 v23, 0x2000, v19
global_load_dwordx4 v[{W2}:{W2+3}], v19, s[14:15]{WP}
global_load_dwordx4 v[{W2+4}:{W2+7}], v19, s[14:15] offset:1024{WP}
global_load_dwordx4 v[{W2+8}:{W2+11}], v23, s[14:15]{WP}
global_load_dwordx4 v[{W2+12}:{W2+15}], v23, s[14:15] offset:1024{WP}
L_K_now2:
global_load_dwordx4 v[{WO}:{WO+3}], v8, s[12:13]{WP}
global_load_dwordx4 v[{WO+4}:{WO+7}], v9, s[12:13]{WP}
""")
stamp(6)
lds_spin(4, F_P, 4, 19, 28)
a(f"""
s_lshl_b32 s24, s6, 4
v_mov_b32 v25, s24
ds_read_b128 v[32:35], v25 offset:{L_MX}
ds_read_b128 v[36:39], v25 offset:{L_LS}
s_lshl_b32 s24, s6, 6
v_bfe_u32 v26, v0, 2, 1
v_lshlrev_b32 v26, 10, v26
v_lshl_add_u32 v26, v1, 8, v26
v_lshl_add_u32 v26, v2, 4, v26
v_bfe_u32 v28, v0, 3, 1
v_lshl_add_u32 v26, v28, 3, v26
v_add_u32 v26, s24, v26
s_lshl_b32 s24, s4, 5
s_add_u32 s24, s24, s5
s_lshl_b32 s24, s24, 12
s_lshl_b32 s25, s6, 10
s_add_u32 s24, s24, s25
s_add_u32 s24, s24, {W_OREC}
v_lshlrev_b32 v27, 4, v0
v_add_u32 v27, s24, v27
s_waitcnt lgkmcnt(0)
v_max3_f32 v42, v32, v33, v34
v_max_f32 v42, v42, v35
v_add_f32 v43, v36, v37
v_add_f32 v36, v38, v39
v_add_f32 v43, v43, v36
""")
a(f"""
s_cmp_eq_u32 s35, 1
s_cbranch_scc0 L_K_skipw2
""")
lds_spin(4, F_H, 1, 19, 28)
a(f"""
s_lshl_b32 s24, s6, 5
v_lshlrev_b32 v19, 7, v3
v_lshl_add_u32 v19, v1, 2, v19
v_add_u32 v19, s24, v19
ds_read_b32 v44, v19 offset:{L_H}
ds_read_b32 v45, v19 offset:{L_H+16}
s_mov_b32 s24, 0x01000100
s_mov_b32 s25, 0x03020302
s_waitcnt lgkmcnt(0)
v_perm_b32 v46, v44, v44, s24
v_perm_b32 v47, v44, v44, s25
v_perm_b32 v48, v45, v45, s24
v_perm_b32 v49, v45, v45, s25
""")
for i in range(4):
    a(f"v_and_b32 v{50+2*i}, v{46+i}, v{M0}")
    a(f"v_and_b32 v{51+2*i}, v{46+i}, v{M1}")
a("s_waitcnt vmcnt(2)")
for i in range(4):
    c1_ = "0" if i == 0 else f"v[{ACC2}:{ACC2+3}]"
    c2_ = "0" if i == 0 else f"v[{ACC2+4}:{ACC2+7}]"
    a(f"v_mfma_f32_16x16x16_bf16 v[{ACC2}:{ACC2+3}], v[{W2+4*i}:{W2+4*i+1}], v[{50+2*i}:{51+2*i}], {c1_}")
    a(f"v_mfma_f32_16x16x16_bf16 v[{ACC2+4}:{ACC2+7}], v[{W2+4*i+2}:{W2+4*i+3}], v[{50+2*i}:{51+2*i}], {c2_}")
a("s_nop 7")
a.label("L_K_skipw2")
stamp(7)
a("s_barrier")
for w in range(4):
    a(f"ds_read_b64 v[{32+2*w}:{33+2*w}], v26 offset:{L_RED1 + 2048*w}")
a(f"""
s_waitcnt lgkmcnt(0)
v_pk_add_f32 v[32:33], v[32:33], v[34:35]
v_pk_add_f32 v[36:37], v[36:37], v[38:39]
v_pk_add_f32 v[40:41], v[32:33], v[36:37]
global_store_dwordx4 v27, v[40:43], s[20:21] sc1
""")
stamp(8)
a(f"""
s_cmp_eq_u32 s35, 1
s_cbranch_scc0 L_K_skipw2b
s_lshl_b32 s24, s6, 11
v_lshlrev_b32 v30, 4, v0
v_add_u32 v30, s24, v30
ds_write_b128 v30, v[{ACC2}:{ACC2+3}] offset:{L_RED3}
ds_write_b128 v30, v[{ACC2+4}:{ACC2+7}] offset:{L_RED3+1024}
L_K_skipw2b:
""")
wo_stage(6)
a("s_waitcnt lgkmcnt(0)")
stamp(10)
a("s_barrier")
a(f"""
s_cmp_lt_u32 s6, 2
s_cbranch_scc0 L_K_pubm
s_lshl_b32 s26, s4, 3
s_lshr_b32 s27, s5, 2
s_add_u32 s26, s26, s27
s_and_b32 s27, s5, 3
""")
red_publish(L_RED2, 8, 6, W_SP, 26, 27, 6)
stamp(11)
a(f"""
s_cmp_eq_u32 s6, 0
s_cbranch_scc1 L_final
""")
stamp_store(20)
a("s_endpgm")
a.label("L_K_pubm")
a(f"""
s_cmp_eq_u32 s35, 1
s_cbranch_scc0 L_K_done
s_sub_u32 s28, s6, 2
s_lshr_b32 s26, s34, 2
s_and_b32 s27, s34, 3
""")
red_publish(L_RED3, 4, 28, W_MP, 26, 27, 5)
a.label("L_K_done")
stamp(11)
stamp_store(20)
a("s_endpgm")

a.label("L_final")
l = lbl("fp")
a(f"""
s_bfe_u32 s24, s2, 0x20002
s_bfe_u32 s25, s2, 0x20004
s_lshl_b32 s25, s25, 9
s_and_b32 s26, s2, 3
s_lshl_b32 s26, s26, 7
s_add_u32 s25, s25, s26
s_lshr_b32 s26, s2, 6
s_lshl_b32 s26, s26, 5
s_add_u32 s25, s25, s26
s_lshl_b32 s26, s24, 17
s_add_u32 s26, s26, s25
s_add_u32 s26, s26, {W_SP}
s_lshl_b32 s27, s24, 16
s_add_u32 s27, s27, s25
s_add_u32 s27, s27, {W_MP}
v_lshlrev_b32 v30, 11, v0
v_add_u32 v31, s27, v30
v_add_u32 v30, s26, v30
""")
for i in range(8):
    a(f"v_mov_b32 v{40+i}, 0")
a(f"""
s_mov_b32 s26, 0
{l}_fl:
v_xor_b32 v74, s9, v74
v_xor_b32 v75, s9, v75
v_or_b32 v74, v74, v75
v_cmp_ne_u32 vcc, 0, v74
s_cbranch_vccz {l}_flok
s_add_u32 s26, s26, 1
s_cmp_lt_u32 s26, {SPIN_MAX}
s_cbranch_scc0 {l}_flok
global_load_dword v74, v72, s[20:21] sc1
global_load_dword v75, v73, s[20:21] sc1
s_waitcnt vmcnt(0)
s_branch {l}_fl
{l}_flok:
s_mov_b32 s26, 0
s_mov_b32 s28, 0x0fffffff
s_mov_b32 s29, 0
{l}:
global_load_dwordx4 v[32:35], v30, s[20:21] sc1
global_load_dwordx4 v[36:39], v30, s[20:21] offset:16 sc1
s_mov_b64 exec, s[28:29]
global_load_dwordx4 v[40:43], v31, s[20:21] sc1
global_load_dwordx4 v[44:47], v31, s[20:21] offset:16 sc1
s_mov_b64 exec, -1
s_waitcnt vmcnt(0)
v_max3_u32 v48, v32, v33, v34
v_max3_u32 v49, v35, v36, v37
v_max3_u32 v48, v48, v38, v39
v_max3_u32 v49, v49, v40, v41
v_max3_u32 v48, v48, v42, v43
v_max3_u32 v49, v49, v44, v45
v_max3_u32 v48, v48, v46, v47
v_max_u32 v48, v48, v49
v_cmp_eq_u32 vcc, -1, v48
s_cbranch_vccz {l}_ok
s_add_u32 s26, s26, 1
s_cmp_lt_u32 s26, {SPIN_MAX}
s_cbranch_scc1 {l}
{l}_ok:
""")
stamp(12)
for i in range(8):
    a(f"v_permlane32_swap_b32 v{32+i}, v{40+i}")
for i in range(8):
    a(f"v_add_f32 v{32+i}, v{32+i}, v{40+i}")
for i in range(4):
    a(f"v_permlane16_swap_b32 v{32+i}, v{36+i}")
for i in range(4):
    a(f"v_add_f32 v{32+i}, v{32+i}, v{36+i}")
for r in (8, 4, 2, 1):
    for i in range(4):
        a(f"v_add_f32_dpp v{32+i}, v{32+i}, v{32+i} row_ror:{r} row_mask:0xf bank_mask:0xf")
a(f"""
v_cndmask_b32 v32, v32, v33, s[30:31]
v_cndmask_b32 v34, v34, v35, s[30:31]
v_cndmask_b32 v32, v32, v34, s[32:33]
v_mov_b32 v33, v32
v_permlane32_swap_b32 v32, v33
v_lshlrev_b32 v152, 16, v152
v_lshlrev_b32 v153, 16, v153
""")
bf16r(32, 32)
bf16r(33, 33)
a("v_add_f32 v33, v33, v153")
bf16r(33, 33)
a(f"""
v_mul_f32 v34, {f2u(-math.log2(math.e)):#x}, v33
v_exp_f32 v34, v34
v_add_f32 v34, 1.0, v34
v_rcp_f32 v34, v34
v_mul_f32 v33, v33, v34
""")
bf16r(33, 33)
a("v_mul_f32 v32, v32, v33")
bf16r(32, 32)
a(f"""
v_add_f32 v32, v32, v152
v_cvt_pk_bf16_f32 v32, v32, v32
s_mov_b32 s28, 0x000f000f
s_mov_b32 s29, 0
s_mov_b64 exec, s[28:29]
global_store_short v154, v32, s[16:17]
s_cmp_eq_u32 s2, 0
s_cbranch_scc0 L_noep
s_mov_b64 exec, 1
v_mov_b32 v33, s9
v_mov_b32 v34, {W_EP:#x}
global_store_dword v34, v33, s[20:21] sc1
L_noep:
s_mov_b64 exec, -1
""")
stamp(13)
stamp_store(20)
a("s_endpgm")

a.label("L_V")
kv_setup(6, 40)
VD = 80
a(f"""
v_lshlrev_b32 v6, 4, v0
s_add_u32 s34, s6, 4
s_barrier
""")
kv_loads(6, VD)
lds_inc(4, 5, F_VI)
stamp(1)
wo_addr(34, 8)
masks(M0, M1)
lds_spin(4, F_VI, 4, 19, 28)
a(f"""
global_load_dwordx4 v[{WO}:{WO+3}], v8, s[12:13]{WP}
global_load_dwordx4 v[{WO+4}:{WO+7}], v9, s[12:13]{WP}
s_lshl_b32 s28, s6, 10
v_lshlrev_b32 v22, 8, v3
v_lshl_add_u32 v22, v1, 6, v22
v_add_u32 v22, s28, v22
""")
stamp(2)
lds_spin(4, F_P, 4, 19, 28)
PB = 24
for q in range(4):
    a(f"ds_read_b128 v[{PB+4*q}:{PB+4*q+3}], v22 offset:{L_P + 16*q}")
a("s_waitcnt lgkmcnt(0)")
for t in range(16):
    a(f"v_and_b32 v{40+2*t}, v{PB+t}, v{M0}")
    a(f"v_and_b32 v{41+2*t}, v{PB+t}, v{M1}")
stamp(3)
for t in range(16):
    a(f"s_waitcnt vmcnt({17-t})")
    c1_ = "0" if t == 0 else f"v[{ACC}:{ACC+3}]"
    c2_ = "0" if t == 0 else f"v[{ACC+4}:{ACC+7}]"
    a(f"v_mfma_f32_16x16x16_bf16 v[{ACC}:{ACC+3}], v[{VD+4*t}:{VD+4*t+1}], v[{40+2*t}:{41+2*t}], {c1_}")
    a(f"v_mfma_f32_16x16x16_bf16 v[{ACC+4}:{ACC+7}], v[{VD+4*t+2}:{VD+4*t+3}], v[{40+2*t}:{41+2*t}], {c2_}")
a(f"""
s_lshl_b32 s24, s6, 11
v_lshlrev_b32 v30, 4, v0
v_add_u32 v30, s24, v30
ds_write_b128 v30, v[{ACC}:{ACC+3}] offset:{L_RED1}
ds_write_b128 v30, v[{ACC+4}:{ACC+7}] offset:{L_RED1+1024}
s_waitcnt lgkmcnt(0)
""")
stamp(7)
a("s_barrier")
wo_stage(34)
a("s_waitcnt lgkmcnt(0)")
stamp(10)
a("s_barrier")
stamp_store(20)
a.label("L_end")
a("s_endpgm")

NV = 160
a.raw('.section .rodata,"a"')
a.raw(".p2align 6")
a.raw(f".amdhsa_kernel {KN}")
a.raw(f"  .amdhsa_next_free_vgpr {NV}")
a.raw("  .amdhsa_next_free_sgpr 102")
a.raw(f"  .amdhsa_accum_offset {NV}")
a.raw("  .amdhsa_group_segment_fixed_size 0")
a.raw("  .amdhsa_kernarg_size 104")
a.raw("  .amdhsa_user_sgpr_count 2")
a.raw("  .amdhsa_user_sgpr_kernarg_segment_ptr 1")
a.raw("  .amdhsa_system_sgpr_workgroup_id_x 1")
a.raw(".end_amdhsa_kernel")
open(OUT, "w").write(a.render())
```

```python
import sys, os, math, struct
from asmlib import Asm
KN = "recurrent_scan__sliding_block_cached__mixer_channel_mlp__decode_kernel"
OUT = sys.argv[1] if len(sys.argv) > 1 else "k.s"
OPT = dict(a.split("=") for a in sys.argv[2:])
STAMPS = int(OPT.get("stamps", 0))
def pol(p): return "" if p == "none" else " " + p.replace("_", " ")
KVP = pol(OPT.get("kvpol", "nt")); WP = pol(OPT.get("wpol", "nt"))
WN = int(OPT.get("wn", 5))
W0 = int(OPT.get("w0", 3)); WV = int(OPT.get("wv", 10))
NB = 16; NG = 4
def f2u(x): return struct.unpack("<I", struct.pack("<f", x))[0]

L_XN = 0; L_Y = 4096; L_CP = 8192; CPR = 272
L_Q = L_CP + 8 * CPR; QB = 144; QH = 288
L_P = L_Q + 4 * QH; PST = 64
L_MX = L_P + 64 * PST; L_LS = L_MX + 64; L_H = L_LS + 64; HB = 144
L_FLG = L_H + 4 * HB
F_Q = L_FLG; F_MX = L_FLG + 16; F_P = L_FLG + 32; F_KC = L_FLG + 48; F_VI = L_FLG + 64; F_H = L_FLG + 80; F_XN = L_FLG + 88; F_Y = L_FLG + 92; F_PUB = L_FLG + 96; F_PURE = L_FLG + 100; F_W2 = L_FLG + 112
L_RED1 = L_FLG + 128
L_WT = L_RED1 + 8192
L_WT = (L_WT + 127) // 128 * 128
LDS_SIZE = L_WT + 32768
L_RED2 = L_WT; L_RED3 = L_WT + 16384
assert L_FLG % 16 == 0 and L_P % 16 == 0 and L_Q % 16 == 0 and L_RED1 % 16 == 0
W_EP = 0xC000; W_FC = 0x38000
W_QP = 0x40000
W_HP = 0xC0000
W_OREC = 0x100000; W_SP = 0x200000; W_MP = 0x280000; W_STAMP = 0x400000
DELTA = 0x800000
NA_Q = int(OPT.get('naq', 8)); NA_O = int(OPT.get('nao', 32))
LCG_A = 0x915f77f5; LCG_C = 0x3c6ef35d
SPIN_MAX = 1 << 16
LOG2E = 0x3fb8aa3b; SCALE = 0x3db504f3; EPS = 0x3727c5ac
NWAVES = 12
LSC = 11; LSPIN_MAX = 1 << 21
TAG = 9

a = Asm()
VST = 164
def stamp(i):
    if STAMPS:
        a(f"""
        s_memrealtime s[100:101]
        s_waitcnt lgkmcnt(0)
        v_writelane_b32 v{VST}, s100, {i}
        """)
def stamp_store(ws):
    if STAMPS:
        a(f"""
        s_mul_i32 s100, s2, {NWAVES}
        s_add_u32 s100, s100, s3
        s_lshl_b32 s100, s100, 6
        s_add_u32 s100, s100, {W_STAMP}
        s_getreg_b32 s101, hwreg(HW_REG_XCC_ID)
        v_writelane_b32 v{VST}, s101, 15
        v_lshlrev_b32 v{VST+1}, 2, v0
        v_add_u32 v{VST+1}, s100, v{VST+1}
        s_mov_b64 exec, 0xffff
        global_store_dword v{VST+1}, v{VST}, s[{ws}:{ws+1}]
        s_waitcnt vmcnt(0)
        """)
uid = [0]
def lbl(p):
    uid[0] += 1
    return f"L_{p}_{uid[0]}"

def lds_wait4(vz, off, vt):
    l = lbl("ls")
    a(f"""
    s_mov_b32 s{LSC}, 0
    {l}:
    ds_read_b128 v[{vt}:{vt+3}], v{vz} offset:{off}
    s_waitcnt lgkmcnt(0)
    v_xor_b32 v{vt}, s{TAG}, v{vt}
    v_xor_b32 v{vt+1}, s{TAG}, v{vt+1}
    v_xor_b32 v{vt+2}, s{TAG}, v{vt+2}
    v_xor_b32 v{vt+3}, s{TAG}, v{vt+3}
    v_or3_b32 v{vt}, v{vt}, v{vt+1}, v{vt+2}
    v_or_b32 v{vt}, v{vt}, v{vt+3}
    v_cmp_ne_u32 vcc, 0, v{vt}
    s_cbranch_vccz {l}_ok
    s_sleep 1
    s_add_u32 s{LSC}, s{LSC}, 1
    s_cmp_lt_u32 s{LSC}, {LSPIN_MAX}
    s_cbranch_scc1 {l}
    {l}_ok:
    """)
def lds_wait1(vz, off, vt, val=None, slp=1):
    l = lbl("l1")
    val = val or f"s{TAG}"
    a(f"""
    s_mov_b32 s{LSC}, 0
    {l}:
    ds_read_b32 v{vt}, v{vz} offset:{off}
    s_waitcnt lgkmcnt(0)
    v_cmp_ne_u32 vcc, {val}, v{vt}
    s_cbranch_vccz {l}_ok
    {"s_sleep %d" % slp if slp else ""}
    s_add_u32 s{LSC}, s{LSC}, 1
    s_cmp_lt_u32 s{LSC}, {LSPIN_MAX}
    s_cbranch_scc1 {l}
    {l}_ok:
    """)
def lds_set(vaddr, vtag, off):
    a(f"ds_write_b32 v{vaddr}, v{vtag} offset:{off}")
def epoch_load(ws):
    a(f"s_load_dword s{TAG}, s[{ws}:{ws+1}], {W_EP}")
def epoch_tag():
    a(f"""
    s_waitcnt lgkmcnt(0)
    s_mul_i32 s{TAG}, s{TAG}, {LCG_A:#x}
    s_add_u32 s{TAG}, s{TAG}, {LCG_C:#x}
    s_or_b32 s{TAG}, s{TAG}, 1
    """)
def tagbytes():
    a(f"""
    s_and_b32 s64, s{TAG}, 0xff
    s_bfe_u32 s65, s{TAG}, 0x80008
    s_bfe_u32 s66, s{TAG}, 0x80010
    s_lshr_b32 s67, s{TAG}, 24
    s_mov_b32 s68, 0xffffff00
    s_mov_b32 s69, 0x0c0c0400
    s_mov_b32 s70, 0x04000c0c
    """)
def tag_put(r):
    for i in range(4):
        a(f"v_and_or_b32 v{r+i}, v{r+i}, v{TM}, s{64+i}")
def tag_get(dst, tmp, r):
    a(f"""
    v_perm_b32 v{dst}, v{r+1}, v{r}, s69
    v_perm_b32 v{tmp}, v{r+3}, v{r+2}, s70
    v_or_b32 v{dst}, v{dst}, v{tmp}
    v_xor_b32 v{dst}, s{TAG}, v{dst}
    """)
TM = 154
def bf16r(dst, src):
    a(f"""
    v_cvt_pk_bf16_f32 v{dst}, v{src}, v{src}
    v_and_b32 v{dst}, 0xffff0000, v{dst}
    """)

def layernorm(X, F, T, S, OUTP, OUT2=None):
    for d in range(16):
        a(f"v_lshlrev_b32 v{F+2*d}, 16, v{X+d}")
        a(f"v_and_b32 v{F+2*d+1}, 0xffff0000, v{X+d}")
    for i in range(8):
        a(f"v_pk_add_f32 v[{T+2*i}:{T+2*i+1}], v[{F+4*i}:{F+4*i+1}], v[{F+4*i+2}:{F+4*i+3}]")
    for n in (4, 2, 1):
        for i in range(n):
            a(f"v_pk_add_f32 v[{T+2*i}:{T+2*i+1}], v[{T+2*i}:{T+2*i+1}], v[{T+2*(i+n)}:{T+2*(i+n)+1}]")
    a(f"v_add_f32 v{S}, v{T}, v{T+1}")
    for r in (8, 4, 2, 1):
        a(f"v_add_f32_dpp v{S}, v{S}, v{S} row_ror:{r} row_mask:0xf bank_mask:0xf")
    a(f"v_mul_f32 v{S}, 0xbb000000, v{S}")
    a(f"v_mov_b32 v{S+1}, v{S}")
    for i in range(4):
        a(f"v_pk_add_f32 v[{T+8+2*i}:{T+9+2*i}], v[{F+2*i}:{F+2*i+1}], v[{S}:{S+1}]")
    for i in range(4):
        a(f"v_pk_mul_f32 v[{T+2*i}:{T+2*i+1}], v[{T+8+2*i}:{T+9+2*i}], v[{T+8+2*i}:{T+9+2*i}]")
    for j in range(1, 4):
        for i in range(4):
            a(f"v_pk_add_f32 v[{T+8+2*i}:{T+9+2*i}], v[{F+8*j+2*i}:{F+8*j+2*i+1}], v[{S}:{S+1}]")
        for i in range(4):
            a(f"v_pk_fma_f32 v[{T+2*i}:{T+2*i+1}], v[{T+8+2*i}:{T+9+2*i}], v[{T+8+2*i}:{T+9+2*i}], v[{T+2*i}:{T+2*i+1}]")
    for n in (2, 1):
        for i in range(n):
            a(f"v_pk_add_f32 v[{T+2*i}:{T+2*i+1}], v[{T+2*i}:{T+2*i+1}], v[{T+2*(i+n)}:{T+2*(i+n)+1}]")
    a(f"v_add_f32 v{S+2}, v{T}, v{T+1}")
    for r in (8, 4, 2, 1):
        a(f"v_add_f32_dpp v{S+2}, v{S+2}, v{S+2} row_ror:{r} row_mask:0xf bank_mask:0xf")
    a(f"v_mul_f32 v{S+2}, 0x3b000000, v{S+2}")
    bf16r(S + 2, S + 2)
    a(f"v_add_f32 v{S+2}, {EPS:#x}, v{S+2}")
    bf16r(S + 2, S + 2)
    a(f"v_sqrt_f32 v{S+2}, v{S+2}")
    bf16r(S + 2, S + 2)
    a(f"v_rcp_f32 v{S+4}, v{S+2}")
    bf16r(S, S)
    a(f"v_mov_b32 v{S+1}, v{S}")
    a(f"v_mov_b32 v{S+5}, v{S+4}")
    for d0 in range(0, 16, 4):
        for d in range(d0, d0 + 4):
            t = T + 2 * (d - d0)
            a(f"v_pk_add_f32 v[{t}:{t+1}], v[{F+2*d}:{F+2*d+1}], v[{S}:{S+1}]")
        for d in range(d0, d0 + 4):
            t = T + 2 * (d - d0)
            a(f"v_cvt_pk_bf16_f32 v{T+8+d-d0}, v{t}, v{t+1}")
        for d in range(d0, d0 + 4):
            t = T + 2 * (d - d0)
            a(f"v_lshlrev_b32 v{t}, 16, v{T+8+d-d0}")
            a(f"v_and_b32 v{t+1}, 0xffff0000, v{T+8+d-d0}")
        for d in range(d0, d0 + 4):
            t = T + 2 * (d - d0)
            a(f"v_pk_mul_f32 v[{t}:{t+1}], v[{t}:{t+1}], v[{S+4}:{S+5}]")
        for d in range(d0, d0 + 4):
            t = T + 2 * (d - d0)
            o = 4 * ((d >> 1) & 3) + 2 * (d >> 3) + (d & 1)
            a(f"v_cvt_pk_bf16_f32 v{OUTP+o}, v{t}, v{t+1}")
def perm_of(d): return 4 * ((d >> 1) & 3) + 2 * (d >> 3) + (d & 1)

a.raw(f"; @launch grid=(256,1,1) block=({NWAVES*64},1,1) lds={LDS_SIZE}")
a.raw('.amdgcn_target "amdgcn-amd-amdhsa--gfx950"')
a.raw(".text")
a.raw(f".globl {KN}")
a.raw(".p2align 8")
a.raw(f".type {KN},@function")
a.label(KN)
a(f"""
s_cmp_ge_u32 s2, 256
s_cbranch_scc1 L_end
s_load_dwordx16 s[36:51], s[0:1], 0
s_load_dwordx8 s[52:59], s[0:1], 64
s_load_dwordx2 s[60:61], s[0:1], 96
v_lshrrev_b32 v1, 6, v0
v_and_b32 v0, 63, v0
v_readfirstlane_b32 s3, v1
s_and_b32 s4, s2, 7
s_lshr_b32 s5, s2, 3
s_lshr_b32 s7, s5, 3
s_and_b32 s8, s5, 7
s_and_b32 s6, s3, 3
""")
if STAMPS:
    a(f"v_mov_b32 v{VST}, 0")
stamp(0)
a(f"""
s_cmp_lt_u32 s3, 4
s_cbranch_scc1 L_V
s_cmp_lt_u32 s3, 8
s_cbranch_scc0 L_K
""")
X, F, T, S = 16, 32, 64, 80
WD = 96
a(f"""
s_setprio 3
s_lshl_b32 s13, s4, 5
s_add_u32 s13, s13, s5
s_lshl_b32 s12, s4, 4
s_and_b32 s14, s5, 15
s_add_u32 s12, s12, s14
s_lshr_b32 s17, s5, 4
s_add_u32 s17, s17, 1
s_cmp_lt_u32 s4, 7
s_cselect_b32 s17, s17, 0
v_mov_b32 v4, 0
s_cmp_eq_u32 s6, 0
s_cbranch_scc1 L_C0
s_cmp_eq_u32 s6, s17
s_cbranch_scc0 L_C23
s_cmp_eq_u32 s6, 1
s_cbranch_scc1 L_C1
L_C23:
s_waitcnt lgkmcnt(0)
""")
epoch_load(60)
epoch_tag()
a("s_branch L_CF")
def c_gemv(wptr, stride, which, l_act, f_act, wdst):
    a(f"""
    v_lshrrev_b32 v5, 3, v0
    v_and_b32 v6, 7, v0
    s_lshl_b32 s10, s24, 7
    v_add_u32 v14, s10, v5
    v_mul_u32_u24 v14, {stride}, v14
    v_lshl_add_u32 v14, v6, 4, v14
    v_add_u32 v14, s25, v14
    s_waitcnt lgkmcnt(0)
    """)
    epoch_load(60)
    for t in range(16):
        a(f"global_load_dwordx4 v[{WD+4*t}:{WD+4*t+3}], v14, s[{wptr}:{wptr+1}]{WP}")
        if t < 15: a(f"v_add_u32 v14, {8*stride:#x}, v14")
    base = L_WT + which * 16384
    a(f"""
    v_bfe_u32 v7, v5, 1, 2
    v_lshlrev_b32 v7, 1, v7
    v_xor_b32 v7, v7, v6
    v_lshlrev_b32 v7, 4, v7
    v_lshl_add_u32 v7, v5, 7, v7
    v_lshrrev_b32 v5, 2, v0
    v_bfe_u32 v6, v0, 1, 1
    v_bfe_u32 v14, v5, 1, 2
    v_lshlrev_b32 v14, 1, v14
    v_or_b32 v6, v6, v14
    v_lshlrev_b32 v6, 4, v6
    v_and_b32 v14, 1, v0
    v_lshl_add_u32 v6, v14, 3, v6
    v_lshl_add_u32 v20, v5, 7, v6
    v_xor_b32 v21, 32, v20
    v_xor_b32 v22, 64, v20
    v_xor_b32 v23, 0x60, v20
    v_and_b32 v5, 3, v0
    v_lshlrev_b32 v5, 10, v5
    v_lshrrev_b32 v14, 4, v0
    v_lshl_add_u32 v5, v14, 4, v5
    s_lshl_b32 s10, s24, 8
    v_add_u32 v5, s10, v5
    v_cmp_eq_u32 s[18:19], 1, v14
    v_cmp_eq_u32 s[20:21], 2, v14
    v_cmp_eq_u32 s[22:23], 3, v14
    v_lshlrev_b32 v6, 2, v0
    v_cmp_le_u32 vcc, 22, v0
    v_cndmask_b32 v15, 0, 1, vcc
    v_mul_u32_u24 v16, 22, v15
    v_sub_u32 v16, v0, v16
    v_min_u32 v16, 21, v16
    v_mul_u32_u24 v17, {CPR}, v15
    v_mul_u32_u24 v18, 12, v16
    v_add_u32 v17, v17, v18
    s_mul_i32 s10, s26, 1536
    s_add_u32 s10, s10, {wdst}
    v_mul_u32_u24 v18, 384, v15
    v_lshl_add_u32 v18, v16, 4, v18
    v_add_u32 v18, s10, v18
    """)
    epoch_tag()
    stamp(1)
    for t in range(16):
        a(f"s_waitcnt vmcnt({15 - t})")
        a(f"ds_write_b128 v7, v[{WD+4*t}:{WD+4*t+3}] offset:{base + t*1024}")
    stamp(2)
    A = 144; B = 32; ACC = 96
    for s in range(4):
        for sub in range(4):
            r = B + 16 * s + 4 * sub
            a(f"ds_read_b64_tr_b16 v[{r}:{r+1}], v{20+sub} offset:{base + (32*s)*128}")
            a(f"ds_read_b64_tr_b16 v[{r+2}:{r+3}], v{20+sub} offset:{base + (32*s+16)*128}")
    lds_wait1(4, f_act, 24)
    for s in range(4):
        a(f"ds_read_b128 v[{A+4*s}:{A+4*s+3}], v5 offset:{l_act + 64*s}")
    a(f"""
    v_mov_b32 v27, s{TAG}
    v_mov_b32 v31, s{TAG}
    s_waitcnt lgkmcnt(0)
    """)
    stamp(3)
    for s in range(4):
        for sub in range(4):
            r = B + 16 * s + 4 * sub
            c = "0" if s == 0 else f"v[{ACC+4*sub}:{ACC+4*sub+3}]"
            a(f"v_mfma_f32_16x16x32_bf16 v[{ACC+4*sub}:{ACC+4*sub+3}], v[{A+4*s}:{A+4*s+3}], v[{r}:{r+3}], {c}")
    for sub in range(1, 4):
        for r in range(4):
            a(f"v_cndmask_b32 v{ACC+r}, v{ACC+r}, v{ACC+4*sub+r}, s[{16+2*sub}:{17+2*sub}]")
    cp = L_CP + which * 4 * CPR
    for r in range(4):
        a(f"ds_write_b32 v6, v{ACC+r} offset:{cp + r*CPR}")
    for rnd in range(2):
        for i in range(3):
            a(f"ds_read_b32 v{24+4*rnd+i}, v17 offset:{cp + 2*rnd*CPR + 4*i}")
    a(f"""
    s_mov_b32 s18, -1
    s_movk_i32 s19, 0xfff
    v_add_u32 v19, {DELTA:#x}, v18
    s_mov_b64 exec, s[18:19]
    s_waitcnt lgkmcnt(0)
    global_store_dwordx4 v18, v[24:27], s[60:61]
    global_store_dwordx4 v18, v[28:31], s[60:61] offset:768
    global_store_dwordx4 v19, v[24:27], s[60:61] sc1
    global_store_dwordx4 v19, v[28:31], s[60:61] offset:768 sc1
    s_mov_b64 exec, -1
    """)
    stamp(4)

a.label("L_C0")
a(f"""
s_mov_b32 s24, s7
s_lshl_b32 s25, s4, 10
s_lshl_b32 s26, s8, 7
s_add_u32 s25, s25, s26
s_lshl_b32 s26, s4, 3
s_add_u32 s26, s26, s8
s_lshl_b32 s26, s26, 2
s_add_u32 s26, s26, s7
""")
c_gemv(42, 8192, 0, L_XN, F_XN, W_QP)
a(f"ds_write_b32 v4, v27 offset:{F_PUB}")
a("s_branch L_CF")
a.label("L_C1")
a(f"""
s_and_b32 s24, s12, 3
s_lshr_b32 s25, s12, 2
s_lshl_b32 s25, s25, 7
s_mov_b32 s26, s12
""")
c_gemv(48, 3584, 1, L_Y, F_Y, W_HP)

def fetch(lname, slp):
    a(f"""
    v_add_u32 v19, 3072, v18
    s_mov_b32 s18, -1
    s_movk_i32 s19, 0xfff
    s_mov_b64 exec, s[18:19]
    s_mov_b32 s20, 0
    {lname}:
    global_load_dwordx4 v[32:35], v18, s[60:61] sc1
    global_load_dwordx4 v[36:39], v18, s[60:61] offset:1536 sc1
    global_load_dwordx4 v[40:43], v19, s[60:61] sc1
    global_load_dwordx4 v[44:47], v19, s[60:61] offset:1536 sc1
    s_waitcnt vmcnt(0)
    v_xor_b32 v48, s{TAG}, v35
    v_xor_b32 v49, s{TAG}, v39
    v_xor_b32 v50, s{TAG}, v43
    v_xor_b32 v51, s{TAG}, v47
    v_or3_b32 v48, v48, v49, v50
    v_or_b32 v48, v48, v51
    v_cmp_ne_u32 vcc, 0, v48
    s_and_b64 exec, exec, vcc
    s_cbranch_execz {lname}_ok
    s_sleep {slp}
    s_add_u32 s20, s20, 1
    s_cmp_eq_u32 s20, {NA_Q}
    s_cselect_b32 s21, {DELTA:#x}, 0
    v_add_u32 v18, s21, v18
    v_add_u32 v19, s21, v19
    s_cmp_lt_u32 s20, {SPIN_MAX}
    s_cbranch_scc1 {lname}
    {lname}_ok:
    s_mov_b64 exec, s[18:19]
    v_pk_add_f32 v[32:33], v[32:33], v[36:37]
    v_pk_add_f32 v[40:41], v[40:41], v[44:45]
    v_add_f32 v34, v34, v38
    v_add_f32 v42, v42, v46
    v_pk_add_f32 v[32:33], v[32:33], v[40:41]
    v_add_f32 v34, v34, v42
    """)

a.label("L_CF")
a(f"""
s_setprio 2
v_cmp_le_u32 vcc, 22, v0
v_cndmask_b32 v15, 0, 1, vcc
v_mul_u32_u24 v16, 22, v15
v_sub_u32 v16, v0, v16
v_min_u32 v16, 21, v16
s_lshl_b32 s10, s4, 3
s_lshl_b32 s14, s6, 1
s_add_u32 s10, s10, s14
s_mul_i32 s10, s10, 6144
s_mul_i32 s14, s7, 384
s_add_u32 s10, s10, s14
s_add_u32 s10, s10, {W_QP}
v_mul_u32_u24 v18, 6144, v15
v_lshl_add_u32 v18, v16, 4, v18
v_add_u32 v18, s10, v18
s_mul_i32 s10, s6, {QH}
v_mul_u32_u24 v17, {QB}, v15
v_mul_u32_u24 v14, 6, v16
v_add3_u32 v17, v17, v14, s10
s_lshl_b32 s10, s6, 2
v_mov_b32 v5, s10
v_mov_b32 v6, s{TAG}
""")
lds_wait1(4, F_PUB, 24, slp=4)
if int(OPT.get("fs0", 2)): a(f"s_sleep {int(OPT.get('fs0', 2))}")
stamp(5)
fetch("L_qf", int(OPT.get("fsl", 2)))
stamp(6)
if STAMPS: a(f"v_writelane_b32 v{VST}, s20, 10")
a(f"""
v_cvt_pk_bf16_f32 v32, v32, v33
v_cvt_pk_bf16_f32 v34, v34, v34
ds_write_b16 v17, v32 offset:{L_Q}
ds_write_b16_d16_hi v17, v32 offset:{L_Q+2}
ds_write_b16 v17, v34 offset:{L_Q+4}
s_mov_b64 exec, -1
""")
lds_set(5, 6, F_Q)
stamp(7)
a(f"""
s_cmp_eq_u32 s17, 2
s_cbranch_scc0 L_C_exit
s_cmp_lt_u32 s6, 2
s_cbranch_scc0 L_C_exit
s_lshr_b32 s14, s12, 2
s_mul_i32 s10, s14, 6144
s_mul_i32 s15, s6, 768
s_add_u32 s10, s10, s15
s_add_u32 s10, s10, {W_HP}
v_mul_u32_u24 v18, 384, v15
v_lshl_add_u32 v18, v16, 4, v18
v_add_u32 v18, s10, v18
s_mul_i32 s10, s6, {2*HB}
v_mul_u32_u24 v17, {HB}, v15
v_add3_u32 v17, v17, v14, s10
s_lshl_b32 s14, s14, 7
v_add_u32 v20, s14, v14
v_min_u32 v21, {3584-4}, v20
v_add_u32 v21, 2, v21
v_min_u32 v22, {3584-6}, v20
v_add_u32 v22, 4, v22
global_load_ushort v52, v20, s[50:51]
global_load_ushort v53, v21, s[50:51]
global_load_ushort v54, v22, s[50:51]
""")
fetch("L_hf", int(OPT.get("hsl", 4)))
stamp(8)
for r in range(3): bf16r(32 + r, 32 + r)
for r in range(3): a(f"v_lshlrev_b32 v{52+r}, 16, v{52+r}")
for r in range(3): a(f"v_add_f32 v{32+r}, v{32+r}, v{52+r}")
for r in range(3): bf16r(32 + r, 32 + r)
c1 = -2 * math.log2(math.e) * math.sqrt(2 / math.pi); c2 = c1 * 0.044715
a(f"s_mov_b32 s14, {f2u(c2):#x}")
a(f"v_mov_b32 v28, {f2u(c1):#x}")
for r in range(3): a(f"v_mul_f32 v{24+r}, v{32+r}, v{32+r}")
for r in range(3): a(f"v_fma_f32 v{24+r}, v{24+r}, s14, v28")
for r in range(3): a(f"v_mul_f32 v{24+r}, v{24+r}, v{32+r}")
for r in range(3): a(f"v_exp_f32 v{24+r}, v{24+r}")
for r in range(3): a(f"v_add_f32 v{24+r}, 1.0, v{24+r}")
for r in range(3): a(f"v_rcp_f32 v{24+r}, v{24+r}")
for r in range(3): a(f"v_mul_f32 v{32+r}, v{32+r}, v{24+r}")
a(f"""
v_cvt_pk_bf16_f32 v32, v32, v33
v_cvt_pk_bf16_f32 v34, v34, v34
ds_write_b16 v17, v32 offset:{L_H}
ds_write_b16_d16_hi v17, v32 offset:{L_H+2}
ds_write_b16 v17, v34 offset:{L_H+4}
s_mov_b64 exec, -1
""")
lds_set(5, 6, F_H)
stamp(9)
a.label("L_C_exit")
stamp_store(60)
a("s_endpgm")

def kv_setup(ptr, prio):
    a(f"""
    s_setprio {prio}
    s_lshl_b32 s10, s7, 24
    s_lshl_b32 s11, s4, 21
    s_add_u32 s10, s10, s11
    s_lshl_b32 s11, s8, 16
    s_add_u32 s10, s10, s11
    s_add_u32 s10, s10, {6144*256}
    s_lshl_b32 s18, s5, 1
    s_lshl_b32 s11, s6, 4
    s_add_u32 s18, s18, s11
    v_lshrrev_b32 v1, 4, v0
    v_and_b32 v2, 3, v0
    v_bfe_u32 v3, v0, 2, 2
    v_mov_b32 v4, 0
    s_lshl_b32 s28, s6, 2
    v_mov_b32 v5, s28
    s_waitcnt lgkmcnt(0)
    s_mov_b64 s[12:13], s[44:45]
    s_mov_b64 s[14:15], s[52:53]
    s_mov_b64 s[16:17], s[56:57]
    s_mov_b64 s[20:21], s[60:61]
    s_add_u32 s22, s{ptr}, s10
    s_addc_u32 s23, s{ptr+1}, 0
    """)
def kv_load(t, voff, D):
    a(f"""
    s_add_u32 s10, s18, {t}
    s_and_b32 s10, s10, 63
    s_lshl_b32 s10, s10, 10
    v_add_u32 v7, s10, v{voff}
    global_load_dwordx4 v[{D+4*t}:{D+4*t+3}], v7, s[22:23]{KVP}
    """)
def wo_addr(wprime_s, vdst):
    a(f"""
    s_lshl_b32 s24, s4, 3
    s_lshr_b32 s25, s5, 2
    s_add_u32 s24, s24, s25
    s_lshl_b32 s24, s24, 6
    s_lshr_b32 s25, s{wprime_s}, 1
    s_lshl_b32 s25, s25, 4
    s_add_u32 s24, s24, s25
    s_and_b32 s25, s{wprime_s}, 1
    s_lshl_b32 s25, s25, 2
    s_add_u32 s24, s24, s25
    s_lshl_b32 s24, s24, 10
    s_and_b32 s25, s5, 3
    s_lshl_b32 s25, s25, 8
    s_add_u32 s24, s24, s25
    v_and_b32 v{vdst}, 15, v0
    v_lshlrev_b32 v{vdst}, 4, v{vdst}
    v_lshl_add_u32 v{vdst}, v1, 10, v{vdst}
    v_add_u32 v{vdst}, s24, v{vdst}
    v_add_u32 v{vdst+1}, 0x2000, v{vdst}
    """)
def masks(m0, m1):
    a(f"""
    v_mov_b32 v{m0}, 0xffff
    v_and_b32 v{m1}, 1, v2
    v_lshlrev_b32 v{m1}, 4, v{m1}
    v_lshlrev_b32 v{m0}, v{m1}, v{m0}
    v_cmp_gt_u32 vcc, 2, v2
    v_cndmask_b32 v{m1}, v{m0}, v4, vcc
    v_cndmask_b32 v{m0}, v4, v{m0}, vcc
    """)
KD = 80; WO = 156; W2 = 44; M0, M1 = 10, 11; ACC = 12; ACC2 = 64
def orec_addr(wp):
    a(f"""
    s_lshl_b32 s24, s4, 17
    s_lshr_b32 s25, s5, 2
    s_lshl_b32 s25, s25, 9
    s_add_u32 s24, s24, s25
    s_lshl_b32 s25, s{wp}, 6
    s_add_u32 s24, s24, s25
    s_add_u32 s24, s24, {W_OREC}
    v_lshlrev_b32 v150, 15, v3
    v_lshl_add_u32 v150, v2, 13, v150
    v_lshl_add_u32 v150, v1, 4, v150
    v_add_u32 v150, s24, v150
    v_add_u32 v151, 0x1000, v150
    s_lshl_b32 s24, s{wp}, 11
    v_lshlrev_b32 v152, 4, v0
    v_add_u32 v152, s24, v152
    """)
def wo_stage():
    R = 32
    l = lbl("op")
    a(f"""
    s_mov_b32 s26, 0
    s_mov_b32 s24, {LOG2E:#x}
    {l}:
    global_load_dwordx4 v[{R}:{R+3}], v150, s[20:21] sc1
    global_load_dwordx4 v[{R+4}:{R+7}], v151, s[20:21] sc1
    s_waitcnt vmcnt(0)
    """)
    tag_get(31, 30, R)
    tag_get(29, 30, R + 4)
    a(f"""
    v_or_b32 v31, v31, v29
    v_cmp_ne_u32 vcc, 0, v31
    s_and_b64 exec, exec, vcc
    s_cbranch_execz {l}_ok
    s_add_u32 s26, s26, 1
    s_cmp_eq_u32 s26, {NA_O}
    s_cselect_b32 s25, {DELTA:#x}, 0
    v_add_u32 v150, s25, v150
    v_add_u32 v151, s25, v151
    s_cmp_lt_u32 s26, {SPIN_MAX}
    s_cbranch_scc1 {l}
    {l}_ok:
    s_mov_b64 exec, -1
    """)
    stamp(9)
    a(f"""
    v_and_b32 v{R+2}, 0xffff0000, v{R+2}
    v_and_b32 v{R+6}, 0xffff0000, v{R+6}
    v_max_f32 v40, v{R+2}, v{R+6}
    v_max_f32_dpp v40, v40, v40 quad_perm:[1,0,3,2] row_mask:0xf bank_mask:0xf
    v_max_f32_dpp v40, v40, v40 quad_perm:[2,3,0,1] row_mask:0xf bank_mask:0xf
    v_sub_f32 v41, v{R+2}, v40
    v_sub_f32 v42, v{R+6}, v40
    v_mul_f32 v41, s24, v41
    v_mul_f32 v42, s24, v42
    v_exp_f32 v41, v41
    v_exp_f32 v42, v42
    v_mul_f32 v43, v41, v{R+3}
    v_mul_f32 v44, v41, v{R}
    v_mul_f32 v45, v41, v{R+1}
    v_fmac_f32 v43, v42, v{R+7}
    v_fmac_f32 v44, v42, v{R+4}
    v_fmac_f32 v45, v42, v{R+5}
    v_add_f32_dpp v43, v43, v43 quad_perm:[1,0,3,2] row_mask:0xf bank_mask:0xf
    v_add_f32_dpp v44, v44, v44 quad_perm:[1,0,3,2] row_mask:0xf bank_mask:0xf
    v_add_f32_dpp v45, v45, v45 quad_perm:[1,0,3,2] row_mask:0xf bank_mask:0xf
    v_add_f32_dpp v43, v43, v43 quad_perm:[2,3,0,1] row_mask:0xf bank_mask:0xf
    v_add_f32_dpp v44, v44, v44 quad_perm:[2,3,0,1] row_mask:0xf bank_mask:0xf
    v_add_f32_dpp v45, v45, v45 quad_perm:[2,3,0,1] row_mask:0xf bank_mask:0xf
    v_rcp_f32 v43, v43
    v_mul_f32 v44, v44, v43
    v_mul_f32 v45, v45, v43
    v_cvt_pk_bf16_f32 v44, v44, v44
    v_cvt_pk_bf16_f32 v45, v45, v45
    v_and_b32 v46, v44, v{M0}
    v_and_b32 v47, v44, v{M1}
    v_and_b32 v48, v45, v{M0}
    v_and_b32 v49, v45, v{M1}
    v_mfma_f32_16x16x16_bf16 v[{ACC}:{ACC+3}], v[{WO}:{WO+1}], v[46:47], 0
    v_mfma_f32_16x16x16_bf16 v[{ACC+4}:{ACC+7}], v[{WO+2}:{WO+3}], v[46:47], 0
    v_mfma_f32_16x16x16_bf16 v[{ACC}:{ACC+3}], v[{WO+4}:{WO+5}], v[48:49], v[{ACC}:{ACC+3}]
    v_mfma_f32_16x16x16_bf16 v[{ACC+4}:{ACC+7}], v[{WO+6}:{WO+7}], v[48:49], v[{ACC+4}:{ACC+7}]
    ds_write_b128 v152, v[{ACC}:{ACC+3}] offset:{L_RED2}
    ds_write_b128 v152, v[{ACC+4}:{ACC+7}] offset:{L_RED2+1024}
    """)
def red_addr(w_s, wbase, rb_s, cg_s, rbpad_log2, vl, vg):
    a(f"""
    s_lshl_b32 s24, s{w_s}, 7
    v_and_b32 v{vl}, 1, v0
    v_lshlrev_b32 v{vl}, 10, v{vl}
    v_bfe_u32 v{vg}, v0, 3, 2
    v_lshl_add_u32 v{vl}, v{vg}, 8, v{vl}
    v_lshrrev_b32 v{vg}, 5, v0
    v_lshl_add_u32 v{vl}, v{vg}, 6, v{vl}
    v_bfe_u32 v{vg}, v0, 1, 2
    v_lshl_add_u32 v{vl}, v{vg}, 4, v{vl}
    v_add_u32 v{vl}, s24, v{vl}
    s_lshl_b32 s24, s{cg_s}, {rbpad_log2}
    s_add_u32 s24, s24, s{rb_s}
    s_lshl_b32 s24, s24, 11
    s_lshl_b32 s25, s{w_s}, 10
    s_add_u32 s24, s24, s25
    s_add_u32 s24, s24, {wbase}
    v_lshlrev_b32 v{vg}, 4, v0
    v_add_u32 v{vg}, s24, v{vg}
    """)
def red_publish(lred, nsrc, vl, vg):
    for w in range(nsrc):
        a(f"ds_read_b128 v[{32+4*w}:{35+4*w}], v{vl} offset:{lred + 2048*w}")
    a("s_waitcnt lgkmcnt(0)")
    n = nsrc
    while n > 1:
        h = n // 2
        for w in range(h):
            for p in range(2):
                x = 32 + 4 * w + 2 * p; y = 32 + 4 * (w + h) + 2 * p
                a(f"v_pk_add_f32 v[{x}:{x+1}], v[{x}:{x+1}], v[{y}:{y+1}]")
        n = h
    tag_put(32)
    a(f"global_store_dwordx4 v{vg}, v[32:35], s[20:21] sc1")
def xrow(op, r, t):
    a(f"""
    v_mov_b32 v{t}, v{r}
    v_permlane32_swap_b32 v{r}, v{t}
    {op} v{r}, v{r}, v{t}
    v_mov_b32 v{t}, v{r}
    v_permlane16_swap_b32 v{r}, v{t}
    {op} v{r}, v{r}, v{t}
    {op}_dpp v{r}, v{r}, v{r} quad_perm:[1,0,3,2] row_mask:0xf bank_mask:0xf
    {op}_dpp v{r}, v{r}, v{r} quad_perm:[2,3,0,1] row_mask:0xf bank_mask:0xf
    """)

a.label("L_K")
kv_setup(38, 2)
epoch_load(20)
a(f"""
v_lshlrev_b32 v6, 8, v3
v_lshl_add_u32 v6, v1, 6, v6
v_lshl_add_u32 v6, v2, 4, v6
""")
for t in range(NB):
    if t >= W0:
        w = min(WN, W0 + (t - W0 + 1) // 1) if t < W0 + (WN - W0) * 2 else WN
        infl = min(WN, W0 + (t - W0 + 1) // 2)
        a(f"s_waitcnt vmcnt({infl - 1})")
    kv_load(t, 6, KD)
    if t == W0 - 1:
        epoch_tag()
a(f"""
s_lshl_b32 s34, s4, 4
s_and_b32 s24, s5, 15
s_add_u32 s34, s34, s24
s_lshr_b32 s35, s5, 4
s_cmp_lt_u32 s4, 7
s_cselect_b32 s35, s35, 0
s_cmp_eq_u32 s35, 1
s_cbranch_scc0 L_K_now2
s_lshr_b32 s24, s34, 2
s_lshl_b32 s24, s24, 6
s_lshl_b32 s25, s6, 4
s_add_u32 s24, s24, s25
s_lshl_b32 s24, s24, 10
s_and_b32 s25, s34, 3
s_lshl_b32 s25, s25, 8
s_add_u32 s24, s24, s25
v_and_b32 v19, 15, v0
v_lshlrev_b32 v19, 4, v19
v_lshl_add_u32 v19, v1, 11, v19
v_add_u32 v19, s24, v19
v_add_u32 v23, 0x2000, v19
s_waitcnt vmcnt({WN-1})
global_load_dwordx4 v[{W2}:{W2+3}], v19, s[14:15]{WP}
s_waitcnt vmcnt({WN-1})
global_load_dwordx4 v[{W2+4}:{W2+7}], v19, s[14:15] offset:1024{WP}
s_waitcnt vmcnt({WN-1})
global_load_dwordx4 v[{W2+8}:{W2+11}], v23, s[14:15]{WP}
s_waitcnt vmcnt({WN-1})
global_load_dwordx4 v[{W2+12}:{W2+15}], v23, s[14:15] offset:1024{WP}
L_K_now2:
""")
stamp(1)
a(f"""
s_bfe_u32 s25, s2, 0x20002
s_bfe_u32 s26, s2, 0x20004
s_lshl_b32 s27, s25, 7
s_and_b32 s28, s2, 3
s_lshl_b32 s28, s28, 5
s_add_u32 s27, s27, s28
s_lshr_b32 s28, s2, 6
s_add_u32 s27, s27, s28
v_and_b32 v8, 1, v1
v_lshlrev_b32 v8, 2, v8
v_lshl_add_u32 v8, v2, 3, v8
v_add_u32 v8, s27, v8
v_lshlrev_b32 v79, 1, v8
s_lshl_b32 s26, s26, 10
v_add_u32 v76, s26, v79
v_and_b32 v10, 1, v0
v_cmp_eq_u32 s[30:31], 1, v10
v_and_b32 v10, 2, v0
v_cmp_eq_u32 s[32:33], 2, v10
v_mov_b32 v9, s{TAG}
v_mul_u32_u24 v8, {QH}, v3
v_lshl_add_u32 v8, v1, 6, v8
v_lshl_add_u32 v8, v2, 4, v8
v_lshrrev_b32 v10, 1, v1
v_lshl_add_u32 v8, v10, 4, v8
""")
for i in range(WN):
    a(f"""
    v_add_u32 v10, {2*(i+1)}, v9
    s_waitcnt vmcnt({WN - 1 - i})
    ds_write_b32 v5, v10 offset:{F_KC}
    """)
stamp(2)
lds_wait4(4, F_Q, 12)
a(f"""
ds_read_b128 v[12:15], v8 offset:{L_Q}
s_waitcnt lgkmcnt(0)
""")
stamp(3)
SC = 16
def dreg(t): return 72 if t == 0 else KD + 4 * (t - 1)
for t in range(NB):
    a(f"v_mfma_f32_16x16x32_bf16 v[{dreg(t)}:{dreg(t)+3}], v[{KD+4*t}:{KD+4*t+3}], v[12:15], 0")
stamp(4)
for k in range(4):
    for t in range(NB):
        d = dreg(t)
        if k == 0:
            a(f"v_mov_b32_dpp v{24+t}, v{d} quad_perm:[0,0,0,0] row_mask:0xf bank_mask:0xf")
        else:
            a(f"v_add_f32_dpp v{24+t}, v{d+k}, v{24+t} quad_perm:[{k},{k},{k},{k}] row_mask:0xf bank_mask:0xf")
for G in range(NG):
    a(f"v_cndmask_b32 v{24+4*G}, v{24+4*G}, v{25+4*G}, s[30:31]")
    a(f"v_cndmask_b32 v{26+4*G}, v{26+4*G}, v{27+4*G}, s[30:31]")
for G in range(NG):
    a(f"v_cndmask_b32 v{SC+G}, v{24+4*G}, v{26+4*G}, s[32:33]")
a(f"s_mov_b32 s28, {SCALE:#x}")
for G in range(NG): bf16r(SC + G, SC + G)
for G in range(NG): a(f"v_mul_f32 v{SC+G}, s28, v{SC+G}")
for G in range(NG): bf16r(SC + G, SC + G)
a(f"v_max3_f32 v24, v{SC}, v{SC+1}, v{SC+2}")
a(f"v_max_f32 v24, v24, v{SC+3}")
xrow("v_max_f32", 24, 25)
a(f"""
s_lshl_b32 s28, s6, 10
v_lshlrev_b32 v22, 8, v3
v_lshl_add_u32 v22, v1, 6, v22
v_lshl_add_u32 v22, v2, 2, v22
v_add_u32 v22, s28, v22
s_mov_b32 s28, {LOG2E:#x}
""")
for G in range(NG): a(f"v_sub_f32 v{SC+G}, v{SC+G}, v24")
for G in range(NG): a(f"v_mul_f32 v{SC+G}, s28, v{SC+G}")
for G in range(NG): a(f"v_exp_f32 v{SC+G}, v{SC+G}")
for G in range(NG): a(f"v_cvt_pk_bf16_f32 v{32+G}, v{SC+G}, v{SC+G}")
for G in range(NG): a(f"ds_write_b32 v22, v{32+G} offset:{L_P + 16*G}")
lds_set(5, 9, F_P)
stamp(5)
a(f"v_add_f32 v25, v{SC}, v{SC+1}")
for G in range(2, NG): a(f"v_add_f32 v25, v25, v{SC+G}")
xrow("v_add_f32", 25, 23)
a(f"""
v_lshlrev_b32 v26, 4, v3
v_add_u32 v27, v5, v26
ds_write_b32 v27, v24 offset:{L_MX}
ds_write_b32 v27, v25 offset:{L_LS}
""")
lds_set(5, 9, F_MX)
wo_addr(6, 20)
masks(M0, M1)
a(f"""
s_cmp_eq_u32 s6, 0
s_cbranch_scc0 L_K_nofl
global_load_ushort v77, v76, s[36:37]
global_load_ushort v78, v79, s[54:55]
L_K_nofl:
""")
lds_wait4(4, F_MX, 32)
a(f"""
s_lshl_b32 s24, s6, 4
v_mov_b32 v25, s24
ds_read_b128 v[32:35], v25 offset:{L_MX}
ds_read_b128 v[36:39], v25 offset:{L_LS}
s_lshl_b32 s24, s6, 6
v_bfe_u32 v26, v0, 2, 1
v_lshlrev_b32 v26, 10, v26
v_lshl_add_u32 v26, v1, 8, v26
v_lshl_add_u32 v26, v2, 4, v26
v_bfe_u32 v27, v0, 3, 1
v_lshl_add_u32 v26, v27, 3, v26
v_add_u32 v26, s24, v26
s_lshl_b32 s24, s4, 5
s_add_u32 s24, s24, s5
s_lshl_b32 s24, s24, 12
s_lshl_b32 s25, s6, 10
s_add_u32 s24, s24, s25
s_add_u32 s24, s24, {W_OREC}
v_lshlrev_b32 v27, 4, v0
v_add_u32 v27, s24, v27
v_add_u32 v28, {DELTA:#x}, v27
s_mov_b32 s24, {LOG2E:#x}
s_waitcnt lgkmcnt(0)
v_max3_f32 v62, v32, v33, v34
v_max_f32 v62, v62, v35
""")
for w in range(4): a(f"v_sub_f32 v{32+w}, v{32+w}, v62")
for w in range(4): a(f"v_mul_f32 v{32+w}, s24, v{32+w}")
for w in range(4): a(f"v_exp_f32 v{140+2*w}, v{32+w}")
for w in range(4): a(f"v_mov_b32 v{141+2*w}, v{140+2*w}")
a(f"""
v_mul_f32 v63, v140, v36
v_fmac_f32 v63, v142, v37
v_fmac_f32 v63, v144, v38
v_fmac_f32 v63, v146, v39
""")
orec_addr(6)
a(f"""
s_cmp_lt_u32 s6, 2
s_cbranch_scc0 L_K_pam
s_lshl_b32 s26, s4, 3
s_lshr_b32 s27, s5, 2
s_add_u32 s26, s26, s27
s_and_b32 s27, s5, 3
""")
red_addr(6, W_SP, 26, 27, 6, 136, 137)
a(f"""
s_branch L_K_pad
L_K_pam:
s_sub_u32 s28, s6, 2
s_lshr_b32 s26, s34, 2
s_and_b32 s27, s34, 3
""")
red_addr(28, W_MP, 26, 27, 5, 136, 137)
a.label("L_K_pad")
tagbytes()
a(f"v_mov_b32 v{TM}, s68")
for i in (2, 3):
    a(f"v_and_or_b32 v{60+i}, v{60+i}, v{TM}, s{64+i}")
a(f"""
s_cmp_eq_u32 s35, 1
s_cbranch_scc0 L_K_skipw2
""")
lds_wait1(4, F_H, 19)
lds_wait1(4, F_H + 4, 19)
a(f"""
s_lshl_b32 s24, s6, 5
v_mul_u32_u24 v19, {HB}, v3
v_lshl_add_u32 v19, v1, 2, v19
v_add_u32 v19, s24, v19
ds_read_b32 v112, v19 offset:{L_H}
ds_read_b32 v113, v19 offset:{L_H+16}
s_mov_b32 s24, 0x01000100
s_mov_b32 s25, 0x03020302
s_waitcnt lgkmcnt(0)
v_perm_b32 v114, v112, v112, s24
v_perm_b32 v115, v112, v112, s25
v_perm_b32 v116, v113, v113, s24
v_perm_b32 v117, v113, v113, s25
""")
for i in range(4):
    a(f"v_and_b32 v{118+2*i}, v{114+i}, v{M0}")
    a(f"v_and_b32 v{119+2*i}, v{114+i}, v{M1}")
for i in range(4):
    c1_ = "0" if i == 0 else f"v[{ACC2}:{ACC2+3}]"
    c2_ = "0" if i == 0 else f"v[{ACC2+4}:{ACC2+7}]"
    a(f"v_mfma_f32_16x16x16_bf16 v[{ACC2}:{ACC2+3}], v[{W2+4*i}:{W2+4*i+1}], v[{118+2*i}:{119+2*i}], {c1_}")
    a(f"v_mfma_f32_16x16x16_bf16 v[{ACC2+4}:{ACC2+7}], v[{W2+4*i+2}:{W2+4*i+3}], v[{118+2*i}:{119+2*i}], {c2_}")
a(f"""
ds_write_b128 v152, v[{ACC2}:{ACC2+3}] offset:{L_RED3}
ds_write_b128 v152, v[{ACC2+4}:{ACC2+7}] offset:{L_RED3+1024}
ds_write_b32 v5, v9 offset:{F_W2}
s_cmp_lt_u32 s6, 2
s_cbranch_scc1 L_K_skipw2
""")
lds_wait4(4, F_W2, 32)
red_publish(L_RED3, 4, 136, 137)
a.label("L_K_skipw2")
stamp(6)
lds_wait1(5, F_VI, 24)
a(f"""
global_load_dwordx4 v[{WO}:{WO+3}], v20, s[12:13]{WP}
global_load_dwordx4 v[{WO+4}:{WO+7}], v21, s[12:13]{WP}
""")
stamp(7)
a("s_barrier")
for w in range(4):
    a(f"ds_read_b64 v[{32+2*w}:{33+2*w}], v26 offset:{L_RED1 + 2048*w}")
a(f"""
s_waitcnt lgkmcnt(0)
v_pk_mul_f32 v[60:61], v[32:33], v[140:141]
v_pk_mul_f32 v[40:41], v[36:37], v[144:145]
v_pk_fma_f32 v[60:61], v[34:35], v[142:143], v[60:61]
v_pk_fma_f32 v[40:41], v[38:39], v[146:147], v[40:41]
v_pk_add_f32 v[60:61], v[60:61], v[40:41]
v_and_or_b32 v60, v60, v{TM}, s64
v_and_or_b32 v61, v61, v{TM}, s65
global_store_dwordx4 v27, v[60:63], s[20:21]
global_store_dwordx4 v28, v[60:63], s[20:21] sc1
""")
stamp(8)
wo_stage()
a("s_waitcnt lgkmcnt(0)")
stamp(10)
a("s_barrier")
a(f"""
s_cmp_lt_u32 s6, 2
s_cbranch_scc0 L_K_pubm
""")
red_publish(L_RED2, 8, 136, 137)
stamp(11)
a(f"""
s_cmp_eq_u32 s6, 0
s_cbranch_scc1 L_final
""")
stamp_store(20)
a("s_endpgm")
a.label("L_K_pubm")
stamp_store(20)
a("s_endpgm")

a.label("L_final")
l = lbl("fp")
a(f"""
s_bfe_u32 s24, s2, 0x20002
s_bfe_u32 s25, s2, 0x20004
s_lshl_b32 s25, s25, 9
s_and_b32 s26, s2, 3
s_lshl_b32 s26, s26, 7
s_add_u32 s25, s25, s26
s_lshr_b32 s26, s2, 6
s_lshl_b32 s26, s26, 5
s_add_u32 s25, s25, s26
s_lshl_b32 s26, s24, 17
s_add_u32 s26, s26, s25
s_add_u32 s26, s26, {W_SP}
s_lshl_b32 s27, s24, 16
s_add_u32 s27, s27, s25
s_add_u32 s27, s27, {W_MP}
v_lshlrev_b32 v30, 11, v0
v_add_u32 v31, s27, v30
v_add_u32 v30, s26, v30
""")
for i in range(8):
    a(f"v_mov_b32 v{48+i}, 0")
a(f"""
s_mov_b32 s26, 0
s_mov_b32 s28, 0x0fffffff
s_mov_b32 s29, 0
s_mov_b64 s[24:25], -1
{l}:
global_load_dwordx4 v[40:43], v30, s[20:21] sc1
global_load_dwordx4 v[44:47], v30, s[20:21] offset:16 sc1
s_and_b64 exec, s[24:25], s[28:29]
s_cbranch_execz {l}_nm
global_load_dwordx4 v[48:51], v31, s[20:21] sc1
global_load_dwordx4 v[52:55], v31, s[20:21] offset:16 sc1
{l}_nm:
s_mov_b64 exec, s[24:25]
s_waitcnt vmcnt(0)
""")
tag_get(56, 57, 40)
tag_get(58, 57, 44)
tag_get(59, 57, 48)
tag_get(60, 57, 52)
a(f"""
v_or_b32 v59, v59, v60
v_cndmask_b32 v59, 0, v59, s[28:29]
v_or3_b32 v56, v56, v58, v59
v_cmp_ne_u32 vcc, 0, v56
s_and_b64 s[24:25], exec, vcc
s_mov_b64 exec, s[24:25]
s_cbranch_execz {l}_ok
s_sleep {int(OPT.get("fnsl", 2))}
s_add_u32 s26, s26, 1
s_cmp_lt_u32 s26, {SPIN_MAX}
s_cbranch_scc1 {l}
{l}_ok:
s_mov_b64 exec, -1
""")
stamp(12)
for i in range(8): a(f"v_permlane32_swap_b32 v{40+i}, v{48+i}")
for i in range(8): a(f"v_add_f32 v{40+i}, v{40+i}, v{48+i}")
for i in range(4): a(f"v_permlane16_swap_b32 v{40+i}, v{44+i}")
for i in range(4): a(f"v_add_f32 v{40+i}, v{40+i}, v{44+i}")
for r in (8, 4, 2, 1):
    for i in range(4):
        a(f"v_add_f32_dpp v{40+i}, v{40+i}, v{40+i} row_ror:{r} row_mask:0xf bank_mask:0xf")
a(f"""
v_cndmask_b32 v40, v40, v41, s[30:31]
v_cndmask_b32 v42, v42, v43, s[30:31]
v_cndmask_b32 v40, v40, v42, s[32:33]
v_mov_b32 v41, v40
v_permlane32_swap_b32 v40, v41
v_lshlrev_b32 v77, 16, v77
v_lshlrev_b32 v78, 16, v78
""")
bf16r(40, 40)
bf16r(41, 41)
a("v_add_f32 v41, v41, v78")
bf16r(41, 41)
a(f"""
v_mul_f32 v42, {f2u(-math.log2(math.e)):#x}, v41
v_exp_f32 v42, v42
v_add_f32 v42, 1.0, v42
v_rcp_f32 v42, v42
v_mul_f32 v41, v41, v42
""")
bf16r(41, 41)
a("v_mul_f32 v40, v40, v41")
bf16r(40, 40)
a(f"""
v_add_f32 v40, v40, v77
v_cvt_pk_bf16_f32 v40, v40, v40
s_mov_b32 s28, 0x000f000f
s_mov_b32 s29, 0
s_mov_b64 exec, s[28:29]
global_store_short v76, v40, s[16:17]
s_cmp_eq_u32 s2, 0
s_cbranch_scc0 L_noep
s_mov_b64 exec, 1
v_mov_b32 v41, s{TAG}
v_mov_b32 v42, {W_EP:#x}
global_store_dword v42, v41, s[20:21] sc1
L_noep:
s_mov_b64 exec, -1
""")
stamp(13)
stamp_store(20)
a("s_endpgm")

a.label("L_V")
a(f"""
s_cmp_eq_u32 s6, 0
s_cbranch_scc0 L_V_noln
s_setprio 3
v_lshlrev_b32 v4, 6, v0
s_waitcnt lgkmcnt(0)
""")
for i in range(4):
    a(f"global_load_dwordx4 v[{X+4*i}:{X+4*i+3}], v4, s[36:37] offset:{16*i}")
epoch_load(60)
a("s_waitcnt vmcnt(0)")
stamp(5)
OP = 96
layernorm(X, F, T, S, OP)
for g in range(4):
    a(f"ds_write_b128 v4, v[{OP+4*g}:{OP+4*g+3}] offset:{L_XN + 16*g}")
epoch_tag()
a(f"""
v_mov_b32 v8, 0
v_mov_b32 v9, s{TAG}
ds_write_b32 v8, v9 offset:{F_XN}
""")
stamp(4)
a(f"""
s_cmp_lt_u32 s5, 16
s_cbranch_scc0 L_V_ln_done
""")
for d in range(16):
    a(f"v_mov_b32 v{X+d}, v{OP+perm_of(d)}")
layernorm(X, F, T, S, OP)
for g in range(4):
    a(f"ds_write_b128 v4, v[{OP+4*g}:{OP+4*g+3}] offset:{L_Y + 16*g}")
a(f"ds_write_b32 v8, v9 offset:{F_Y}")
a.label("L_V_ln_done")
stamp(6)
kv_setup(40, 1)
a("s_branch L_V_go")
a.label("L_V_noln")
kv_setup(40, 1)
epoch_load(20)
epoch_tag()
a.label("L_V_go")
a(f"""
v_lshlrev_b32 v6, 4, v0
s_add_u32 s34, s6, 4
v_mov_b32 v9, s{TAG}
""")
tagbytes()
wo_addr(34, 148)
masks(M0, M1)
orec_addr(34)
a(f"""
s_lshl_b32 s28, s6, 10
v_lshlrev_b32 v8, 8, v3
v_lshl_add_u32 v8, v1, 6, v8
v_add_u32 v8, s28, v8
s_lshl_b32 s24, s6, 11
v_lshlrev_b32 v153, 4, v0
v_add_u32 v153, s24, v153
""")
for t in range(NB + 2):
    if t < WN:
        l = lbl("cr")
        a(f"""
        s_mov_b32 s{LSC}, 0
        {l}:
        ds_read_b32 v12, v5 offset:{F_KC}
        s_waitcnt lgkmcnt(0)
        v_subrev_u32 v12, s{TAG}, v12
        v_subrev_u32 v12, {2*(t+1)}, v12
        v_cmp_lt_u32 vcc, {2*(WN-t-1)}, v12
        s_cbranch_vccz {l}_ok
        s_sleep 1
        s_add_u32 s{LSC}, s{LSC}, 1
        s_cmp_lt_u32 s{LSC}, {LSPIN_MAX}
        s_cbranch_scc1 {l}
        {l}_ok:
        """)
    else:
        infl = min(WV, WN + (t - WN + 1))
        if infl <= t: a(f"s_waitcnt vmcnt({infl-1})")
    if t < NB:
        kv_load(t, 6, KD)
    else:
        a(f"global_load_dwordx4 v[{WO+4*(t-NB)}:{WO+4*(t-NB)+3}], v{148+t-NB}, s[12:13]{WP}")
    if t == NB - 1:
        a(f"ds_write_b32 v5, v9 offset:{F_VI}")
a("s_setprio 2")
stamp(2)
PB = 20
lds_wait1(5, F_P, 12)
for q in range(4):
    a(f"ds_read_b128 v[{PB+4*q}:{PB+4*q+3}], v8 offset:{L_P + 16*q}")
a("s_waitcnt lgkmcnt(0)")
for t in range(NB):
    a(f"v_and_b32 v{40+2*t}, v{PB+t}, v{M0}")
    a(f"v_and_b32 v{41+2*t}, v{PB+t}, v{M1}")
stamp(3)
for t in range(NB):
    if NB + 1 - t < WV:
        a(f"s_waitcnt vmcnt({NB+1-t})")
    c1_ = "0" if t == 0 else f"v[{ACC}:{ACC+3}]"
    c2_ = "0" if t == 0 else f"v[{ACC+4}:{ACC+7}]"
    a(f"v_mfma_f32_16x16x16_bf16 v[{ACC}:{ACC+3}], v[{KD+4*t}:{KD+4*t+1}], v[{40+2*t}:{41+2*t}], {c1_}")
    a(f"v_mfma_f32_16x16x16_bf16 v[{ACC+4}:{ACC+7}], v[{KD+4*t+2}:{KD+4*t+3}], v[{40+2*t}:{41+2*t}], {c2_}")
a(f"""
ds_write_b128 v153, v[{ACC}:{ACC+3}] offset:{L_RED1}
ds_write_b128 v153, v[{ACC+4}:{ACC+7}] offset:{L_RED1+1024}
s_waitcnt lgkmcnt(0)
""")
stamp(7)
a("s_barrier")
wo_stage()
a("s_waitcnt lgkmcnt(0)")
stamp(10)
a("s_barrier")
a(f"""
v_lshlrev_b32 v8, 2, v0
s_mov_b32 exec_hi, 0
ds_write_b32 v8, v4 offset:{L_FLG}
s_mov_b32 exec_hi, -1
""")
stamp_store(20)
a.label("L_end")
a("s_endpgm")

NV = 168
a.raw('.section .rodata,"a"')
a.raw(".p2align 6")
a.raw(f".amdhsa_kernel {KN}")
a.raw(f"  .amdhsa_next_free_vgpr {NV}")
a.raw("  .amdhsa_next_free_sgpr 102")
a.raw(f"  .amdhsa_accum_offset {NV}")
a.raw("  .amdhsa_group_segment_fixed_size 0")
a.raw("  .amdhsa_kernarg_size 104")
a.raw("  .amdhsa_user_sgpr_count 2")
a.raw("  .amdhsa_user_sgpr_kernarg_segment_ptr 1")
a.raw("  .amdhsa_system_sgpr_workgroup_id_x 1")
a.raw(".end_amdhsa_kernel")
open(OUT, "w").write(a.render())
```
